```python
import torch

def _softmax(x, axis=-1):
    return torch.softmax(x, dim=axis)

def _gelu(x):
    return torch.nn.functional.gelu(x, approximate='tanh')

def _silu(x):
    return torch.nn.functional.silu(x)

def _sigmoid(x):
    return torch.sigmoid(x)

def _layernorm(x, axis=-1, eps=1e-05):
    m = x.mean(dim=axis, keepdim=True)
    v = x.var(dim=axis, keepdim=True, unbiased=False)
    return (x - m) / torch.sqrt(v + eps)

def _scatter_add(tgt, idx, src, axis=0):
    return tgt.clone().index_add_(axis, idx, src)

def _segment_sum(src, seg, n):
    out = torch.zeros((n,) + src.shape[1:], dtype=src.dtype)
    return out.index_add_(0, seg, src)

def _pad(x, pw):
    flat = tuple((v for pair in reversed(pw) for v in pair))
    return torch.nn.functional.pad(x, flat)
kernel_name = 'parallel_sum__memory_aug_recurrent_mem_tr__glu_gated_geglu__prompt'

def setup_inputs():

    _w = lambda a: (lambda t: t.to(torch.bfloat16) if t.is_floating_point() else t)(torch.as_tensor(a))

    def _A_setup():
        B, S, Dm = (1, 2048, 640)
        H, Dh = (32, 128)
        M, seg = (8, 32)
        seg = min(seg, S)
        S = S // seg * seg
        return {'x': _w((lambda *s: torch.randn(*s, dtype=torch.bfloat16) * 0.05)(B, S, Dm)), 'mem0': _w((lambda *s: torch.randn(*s, dtype=torch.bfloat16) * 0.2)(B, M, Dm)), 'Wq': _w((lambda *s: torch.randn(*s, dtype=torch.bfloat16) * 1.6)(Dm, H, Dh) * Dm ** (-0.5)), 'Wk': _w((lambda *s: torch.randn(*s, dtype=torch.bfloat16) * 1.6)(Dm, H, Dh) * Dm ** (-0.5)), 'Wv': _w((lambda *s: torch.randn(*s, dtype=torch.bfloat16) * 0.2)(Dm, H, Dh) * Dm ** (-0.5)), 'Wo': _w((lambda *s: torch.randn(*s, dtype=torch.bfloat16) * 0.2)(H, Dh, Dm) * (H * Dh) ** (-0.5)), 'seg_len': seg}
    _A_in = _A_setup()

    def _B_setup():
        B, S, Dm, Df = (1, 2048, 640, 1728)
        return {'x': _w((lambda *s: torch.randn(*s, dtype=torch.bfloat16) * 0.05)(B, S, Dm)), 'w_gate': _w((lambda *s: torch.randn(*s, dtype=torch.bfloat16) * 0.4)(Dm, Df) * Dm ** (-0.5)), 'w_up': _w((lambda *s: torch.randn(*s, dtype=torch.bfloat16) * 0.4)(Dm, Df) * Dm ** (-0.5)), 'w_down': _w((lambda *s: torch.randn(*s, dtype=torch.bfloat16) * 0.4)(Df, Dm) * Df ** (-0.5))}
    _B_in = _B_setup()
    return {'A_x': _A_in['x'], 'A_mem0': _A_in['mem0'], 'A_Wq': _A_in['Wq'], 'A_Wk': _A_in['Wk'], 'A_Wv': _A_in['Wv'], 'A_Wo': _A_in['Wo'], 'A_seg_len': _A_in['seg_len'], 'B_x': _B_in['x'], 'B_w_gate': _B_in['w_gate'], 'B_w_up': _B_in['w_up'], 'B_w_down': _B_in['w_down']}

def reference(A_x, A_mem0, A_Wq, A_Wk, A_Wv, A_Wo, A_seg_len, B_x, B_w_gate, B_w_up, B_w_down):

    def _A_ref(x, mem0, Wq, Wk, Wv, Wo, seg_len):
        B, S, Dm = x.shape
        H, Dh = (Wq.shape[1], Wq.shape[2])
        M = mem0.shape[1]
        scale = Dh ** (-0.5)
        n_seg = S // seg_len
        L = M + seg_len
        idx = torch.arange(L)
        mask = (idx[:, None] < M) | (idx[:, None] >= idx[None, :])
        mem = mem0
        outs = []
        for s in range(n_seg):
            xs = x[:, s * seg_len:(s + 1) * seg_len, :].clone()
            h = torch.concatenate([mem, xs], axis=1)
            q = torch.einsum('btd,dhe->bhte', h, Wq)
            k = torch.einsum('btd,dhe->bhte', h, Wk)
            v = torch.einsum('btd,dhe->bhte', h, Wv)
            scores = torch.einsum('bhqe,bhke->bhqk', q, k) * scale
            scores = torch.where(mask[None, None], scores, -1000000000.0)
            p = _softmax(scores, axis=-1)
            o = torch.einsum('bhqk,bhke->bhqe', p, v)
            o = torch.einsum('bhte,hed->btd', o, Wo)
            mem = o[:, :M, :].clone()
            outs.append(o[:, M:, :])
        return torch.concatenate(outs, axis=1)

    def _B_ref(x, w_gate, w_up, w_down):
        g = torch.einsum('bsd,df->bsf', x, w_gate)
        u = torch.einsum('bsd,df->bsf', x, w_up)
        h = _gelu(g) * u
        return torch.einsum('bsf,fd->bsd', h, w_down)
    x = A_x
    xn = _layernorm(x, axis=-1)
    return x + _A_ref(xn, A_mem0, A_Wq, A_Wk, A_Wv, A_Wo, A_seg_len) + _B_ref(xn, B_w_gate, B_w_up, B_w_down)
```

```python
from common import *
from chain import R,mf
def attn():
    begin('attn_kernel',512,0,168,168); lanes()
    e(f'''s_lshl_b32 s20, s2, 2
    s_add_u32 s20, s20, s3
    s_and_b32 s21, s20, 31
    s_lshr_b32 s22, s20, 5
    s_lshl_b32 s23, s22, 18
    s_lshl_b32 s24, s21, 12
    s_add_u32 s23, s23, s24
    s_add_u32 s40, s23, {QF}
    s_add_u32 s41, s23, {QF+0x20000}
    s_add_u32 s42, s23, {KF}
    s_add_u32 s43, s23, {KF+0x20000}
    s_lshl_b32 s44, s20, 12
    s_add_u32 s44, s44, {KM}
    s_lshl_b32 s45, s20, 13
    s_add_u32 s45, s45, {VF}
    s_add_u32 s46, s45, 4096
    s_lshl_b32 s47, s20, 11
    s_add_u32 s47, s47, {VM}
    s_mul_i32 s48, s22, {2*KT*1024}
    s_add_u32 s48, s48, s24
    s_add_u32 s48, s48, {OH}
    s_add_u32 s49, s48, {KT*1024}
    s_mov_b32 s59, 0x3e0293ee
    v_lshlrev_b32 v4, 2, v0
    v_lshlrev_b32 v5, 2, v2
    v_mov_b32 v6, 0xf149f2ca
    s_waitcnt lgkmcnt(0)''')
    for i in range(28): e(f'buffer_load_dwordx4 {R(16+4*i)}, v1, s[4:7], s{40+(i>>2)} offen offset:{(i&3)*1024}')
    for i in range(8): e(f'buffer_load_dword v{128+2*i}, v4, s[4:7], s47 offen offset:{i*256}\nv_mov_b32 v{129+2*i}, 0')
    for r in range(4): e(f'v_add_u32 v7, {r}, v5\nv_cmp_le_u32 s[{60+2*r}:{61+2*r}], v7, v3')
    e('s_waitcnt vmcnt(16)')
    tiles=[(144,80,0),(148,48,0),(152,80,1),(156,48,1),(160,64,1)]
    for u in range(4):
        for a,k,q in tiles: mf(a,k+4*u,16+16*q+4*u,a if u else 0)
    e('s_nop 7')
    for q in range(2):
        m=144+8*q; dg=148+12*q; sv=[m,m+1]+list(range(m+4,dg+4)); P=16+16*q
        for r in range(4): e(f'v_cndmask_b32 v{dg+r}, v6, v{dg+r}, s[{60+2*r}:{61+2*r}]')
        e(f'v_max_f32 v8, v{m}, v{m+1}')
        for i in range(2,len(sv),2): e(f'v_max3_f32 v8, v8, v{sv[i]}, v{sv[i+1]}')
        xsum(8,9,'v_max_f32'); e('v_mul_f32 v8, s59, v8')
        for x in sv: e(f'v_fma_f32 v{x}, v{x}, s59, -v8')
        for x in sv: e(f'v_exp_f32 v{x}, v{x}')
        e(f'v_cvt_pk_bf16_f32 v{P+4}, v{m}, v{m+1}\nv_mov_b32 v{P+5}, 0')
        for d in range(4): e(f'v_cvt_pk_bf16_f32 v{P+d}, v{m+4+2*d}, v{m+5+2*d}' if (q or d<2) else f'v_mov_b32 v{P+d}, 0')
        e(f'v_add_f32 v{10+q}, v{sv[0]}, v{sv[1]}')
        for x in sv[2:]: e(f'v_add_f32 v{10+q}, v{10+q}, v{x}')
        xsum(10+q,9); e(f'v_rcp_f32 v{10+q}, v{10+q}')
    e('s_waitcnt vmcnt(0)')
    for q in range(2):
        P=16+16*q
        for t in range(8): mf(48+4*t,96+4*t,P,0)
        for t in range(8): e(f'v_mfma_f32_16x16x16_bf16 {R(48+4*t)}, {R(128+2*t,2)}, {R(P+4,2)}, {R(48+4*t)}')
        e('s_nop 1')
        for u in range(4):
            for r in range(8): e(f'v_mul_f32 v{48+8*u+r}, v{48+8*u+r}, v{10+q}')
            b=(80 if q==0 else 144)+4*u
            for d in range(4): e(f'v_cvt_pk_bf16_f32 v{b+d}, v{48+8*u+2*d}, v{49+8*u+2*d}')
            e(f'buffer_store_dwordx4 {R(b)}, v1, s[4:7], s{48+q} offen offset:{u*1024}')
    e('s_endpgm')
```

```python
from common import *
SL1=0; SL2=0
MEM=0; KX=10240; QK=18432; OX=8192; WB=22784
ops=[(T,kc) for T in range(4) for kc in range(10)]+[(4,kc) for kc in range(6)]+[(5,kc) for kc in range(7)]
lv=[(4,6),(4,7),(5,7),(4,8),(5,8),(4,9),(5,9)]
def wreg(T,kc,h=None):
    i=ops.index((T,kc)); p,b=('a',8*i) if i<32 else ('v',88+8*(i-32))
    return f'{p}[{b}:{b+7}]' if h is None else f'{p}[{b+4*h}:{b+4*h+3}]'
def R(b,n=4): return f'v[{b}:{b+n-1}]'
def smf(acc,A,B): e(f'v_smfmac_f32_16x16x64_bf16 {R(acc)}, {R(A)}, {B}, v4')
def mf(d,a,b,c): e(f'v_mfma_f32_16x16x32_bf16 {R(d)}, {R(a)}, {R(b)}, {c if c==0 else R(c)}')
def rd(d,av,off): e(f'ds_read_b128 {R(d)}, v{av} offset:{off}')
def rdop(d,off): rd(d,10,off); rd(d+4,10,off+1024)
def lg(n): e(f's_waitcnt lgkmcnt({n})')
def poll(tag,n,av,sreg,mid=None):
    e(f'{tag}:')
    for x in range(n): e(f'buffer_load_dwordx4 {R(16+4*x)}, v{av}, s[4:7], s{sreg+(x>>2)} offen offset:{(x&3)*1024} sc1')
    for x in range(n):
        if mid or x==0: e(f's_waitcnt vmcnt({n-1-x if mid else 0})')
        if mid: mid(x)
        b=16+4*x
        e(f'v_max3_u32 v84, v{b}, v{b+1}, '+('v84' if x else f'v{b+1}')+f'\nv_max3_u32 v84, v{b+2}, v{b+3}, v84')
    e(f'''v_cmp_eq_u32 vcc, -1, v84
    s_cbranch_vccz {tag}_ok
    s_sub_u32 s34, s34, 1
    s_cbranch_scc0 {tag}
    s_endpgm
    {tag}_ok:''')
def chain():
    e(f'''s_lshr_b32 s20, s2, 1
    s_and_b32 s21, s2, 1
    s_lshl_b32 s22, s20, 3
    s_lshl_b32 s23, s3, 1
    s_add_u32 s22, s22, s23
    s_mul_i32 s22, s22, 20480
    s_mul_i32 s38, s3, 34816
    s_add_u32 s38, s38, {WB}
    s_waitcnt lgkmcnt(0)''')
    src=lambda T,kc:[WQ,WK,WV][T>>1]+(T&1)*20480+kc*2048
    for i,(T,kc) in enumerate(lv):
        e(f's_add_u32 s23, s22, {src(T,kc)}\ns_add_u32 m0, s38, {i*2048}\ns_nop 0')
        for h in range(2): e(f'buffer_load_dwordx4 v1, s[4:7], s23 offen offset:{h*1024} lds')
    e(f's_lshl_b32 s24, s21, 2\ns_add_u32 s24, s24, s3\ns_lshl_b32 s25, s20, 12\ns_add_u32 s25, s25, {WOD}')
    for t in range(5):
        e(f's_mul_i32 s23, s24, {4*KT*1024}\ns_add_u32 s23, s23, {t*KT*1024}' if t<4 else f's_mul_i32 s23, s24, {KT*1024}\ns_add_u32 s23, s23, {40*KT*1024}')
        e(f's_add_u32 s23, s23, s25\ns_add_u32 m0, s38, {14336+t*4096}\ns_nop 0')
        for h in range(4): e(f'buffer_load_dwordx4 v1, s[4:7], s23 offen offset:{h*1024} lds')
    for (T,kc) in ops:
        e(f's_add_u32 s23, s22, {src(T,kc)}')
        for h in range(2): e(f'buffer_load_dwordx4 {wreg(T,kc,h)}, v1, s[4:7], s23 offen offset:{h*1024}')
        e('s_waitcnt vmcnt(40)')
    udiv(26,2,20,27); e('s_mul_i32 s27, s26, 20\ns_sub_u32 s27, s2, s27'); udiv(28,27,5,29)
    e(f'''s_mul_i32 s29, s28, 5
    s_sub_u32 s29, s27, s29
    v_mov_b32 v80, v2
    v_mov_b32 v81, v3
    v_mov_b32 v82, v0
    s_mov_b32 s33, 0x7ffffff0
    v_mov_b32 v87, s33
    v_lshlrev_b32 v11, 2, v82
    v_add_u32 v10, s38, v1
    s_lshl_b32 s23, s3, 6
    s_add_u32 s23, s23, {QK}
    v_mul_u32_u24 v0, 544, v80
    v_lshrrev_b32 v83, 2, v81
    v_lshl_add_u32 v0, v83, 4, v0
    v_and_b32 v84, 3, v81
    v_lshl_add_u32 v0, v84, 1, v0
    v_add_u32 v0, s23, v0
    v_and_b32 v85, 7, v81
    v_mul_u32_u24 v2, 272, v85
    v_lshl_add_u32 v2, v80, 4, v2
    v_add_u32 v2, {QK}, v2
    v_and_b32 v86, 1, v81
    v_lshl_add_u32 v3, v83, 1, v86
    v_mul_u32_u24 v3, 272, v3
    v_lshl_add_u32 v3, v80, 4, v3
    v_add_u32 v3, {QK+2176}, v3
    v_cmp_eq_u32 vcc, 1, v86
    v_mov_b32 v4, 0x44444444
    v_mov_b32 v5, 0xeeeeeeee
    v_cndmask_b32 v4, v4, v5, vcc
    v_cmp_le_u32 s[30:31], 8, v81
    s_lshl_b32 s23, s3, 9
    s_add_u32 s23, s23, {OX}
    v_lshrrev_b32 v5, 1, v80
    v_lshlrev_b32 v5, 8, v5
    v_lshl_add_u32 v5, v85, 5, v5
    v_lshrrev_b32 v6, 3, v81
    v_lshl_add_u32 v5, v6, 4, v5
    v_and_b32 v6, 1, v80
    v_lshl_add_u32 v5, v6, 3, v5
    v_add_u32 v5, s23, v5
    s_mul_i32 s23, s21, 20
    s_mul_i32 s24, s3, 5
    s_add_u32 s23, s23, s24
    s_lshl_b32 s23, s23, 13
    s_lshl_b32 s24, s20, 8
    s_add_u32 s23, s23, s24
    v_lshlrev_b32 v6, 13, v80
    v_lshl_add_u32 v6, v81, 4, v6
    v_add_u32 v6, s23, v6
    s_add_u32 s23, s23, 0x8000
    v_add_u32 v7, s23, v11
    v_cmp_eq_u32 vcc, 0, v84
    s_lshl_b32 s23, s2, 13
    s_mul_i32 s24, s3, 3072
    v_cndmask_b32 v7, v87, v7, vcc
    s_cmp_eq_u32 s3, 3
    s_cselect_b32 s23, s23, s24
    v_add_u32 v8, s23, v1
    v_bfe_u32 v9, v81, 1, 1
    v_lshlrev_b32 v9, 4, v9
    v_lshl_add_u32 v9, v80, 5, v9
    s_cmp_eq_u32 s29, 4
    s_cselect_b32 s23, 6, 8
    v_lshlrev_b32 v12, s23, v83
    v_add_u32 v9, v9, v12
    s_lshl_b32 s23, s26, 12
    s_lshl_b32 s24, s28, 10
    s_add_u32 s23, s23, s24
    s_lshl_b32 s24, s29, 6
    s_add_u32 s23, s23, s24
    s_lshl_b32 s24, s26, 10
    s_lshl_b32 s25, s28, 8
    s_add_u32 s24, s24, s25
    s_add_u32 s24, s24, 8192
    s_cmp_eq_u32 s29, 4
    s_cselect_b32 s23, s24, s23
    v_add_u32 v9, s23, v9
    v_and_b32 v12, 33, v82
    v_cmp_eq_u32 vcc, 0, v12
    v_and_b32 v85, 1, v83
    v_lshlrev_b32 v85, 4, v85
    v_cndmask_b32 v9, v87, v9, vcc
    v_mov_b32 v86, 0x3f80
    v_lshlrev_b32 v85, v85, v86''')
    for d in range(4): e(f'v_cmp_eq_u32 vcc, {d}, v84\ns_nop 1\nv_cndmask_b32 v{12+d}, 0, v85, vcc')
    e(f'''s_mov_b32 s50, {P2}
    s_mov_b32 s52, {P1}
    s_mov_b32 s53, {P1+4096}
    s_lshr_b32 s23, s3, 1
    s_lshl_b32 s23, s23, 17
    s_and_b32 s24, s3, 1
    s_lshl_b32 s24, s24, 11
    s_add_u32 s23, s23, s24
    s_lshl_b32 s24, s20, 12
    s_add_u32 s54, s23, s24
    s_add_u32 s54, s54, {KF}
    s_add_u32 s56, s24, {KM}
    s_lshl_b32 s23, s20, 13
    s_lshl_b32 s24, s3, 11
    s_add_u32 s55, s23, s24
    s_lshr_b32 s57, s55, 2
    s_add_u32 s55, s55, {VF}
    s_add_u32 s57, s57, {VM}
    s_add_u32 s39, s24, {KX}
    s_add_u32 s32, s3, s21
    s_mov_b32 s58, 0
    s_mov_b32 s59, 0x3e0293ee
    s_mov_b32 s34, 400000''')
    def kxpf(): e('s_mov_b32 m0, s39\ns_nop 0\nbuffer_load_dwordx4 v1, s[4:7], s54 offen lds\nbuffer_load_dwordx4 v1, s[4:7], s54 offen offset:1024 lds\ns_add_u32 s54, s54, 0x40000')
    def vxpf(): e('buffer_load_dwordx4 v[72:75], v1, s[4:7], s55 offen\nbuffer_load_dwordx4 v[76:79], v1, s[4:7], s55 offen offset:1024\ns_add_u32 s55, s55, 0x40000')
    kxpf(); vxpf()
    e('ch_loop:')
    for i in range(48,72): e(f'v_mov_b32 v{i}, 0')
    e('s_cmp_eq_u32 s3, 3\ns_cbranch_scc1 ch_w3')
    if SL2: e(f's_sleep {SL2}')
    poll('ch_p2',3,8,50)
    for x in range(3): e(f'ds_write_b128 v8, {R(16+4*x)} offset:{x*1024}')
    e('s_branch ch_join\nch_w3:\ns_cmp_eq_u32 s58, 0\ns_cbranch_scc1 ch_nored\ns_cmp_ge_u32 s2, 40\ns_cbranch_scc1 ch_nored')
    if SL1: e(f's_sleep {SL1}')
    poll('ch_p1',8,8,52,lambda x: mf(80,12,16+4*x,80 if x else 0))
    e('''s_nop 3
    v_cvt_pk_bf16_f32 v80, v80, v81
    v_cvt_pk_bf16_f32 v81, v82, v83
    v_min_u32 v80, -2, v80
    v_min_u32 v81, -2, v81
    s_nop 1
    v_mov_b32_dpp v82, v80 quad_perm:[1,1,3,3] row_mask:0xf bank_mask:0xf
    v_mov_b32_dpp v83, v81 quad_perm:[1,1,3,3] row_mask:0xf bank_mask:0xf
    buffer_store_dwordx4 v[80:83], v9, s[4:7], s50 offen sc1
    ch_nored:
    s_add_u32 s51, s50, 9216''')
    poll('ch_p3',1,1,51)
    e(f'ds_write_b128 v1, v[16:19] offset:9216\nch_join:\ns_waitcnt lgkmcnt(0)\ns_barrier')
    for kc in range(4): rd(16+4*kc,1,kc*1024)
    e('s_cmp_lg_u32 s58, 0\ns_cselect_b32 s23, 0x50000, 0\ns_add_u32 s52, s52, s23\ns_add_u32 s53, s53, s23\ns_add_u32 s50, s50, 10240')
    for kc in range(10):
        lg([3,3,3,3,3,3,3,4,5,4][kc])
        for T in range(4): smf(48+4*T,16+4*(kc&3),wreg(T,kc))
        if kc<6: rd(16+4*(kc&3),1,(kc+4)*1024)
        elif kc<8: rdop(32+8*(kc-6),(kc-6)*2048)
    def vl(i):
        T,kc=lv[i]; smf(48+4*T,16+4*(kc&3),R(32+8*(i&1),8))
        if i+2<7: rdop(32+8*(i&1),(i+2)*2048)
    def post(T):
        a=48+4*T; e(f'v_add_f32 v{a}, v{a}, v{a+1}\nv_add_f32 v{a+2}, v{a+2}, v{a+3}\nv_cvt_pk_bf16_f32 v{a}, v{a}, v{a+2}')
    def wr(T):
        o=(T>>1)*2176+8*(T&1); e(f'ds_write_b16 v0, v{48+4*T} offset:{o}\nds_write_b16_d16_hi v0, v{48+4*T} offset:{o+272}')
    lg(2); vl(0); lg(2); vl(1); post(0); post(1); wr(0); wr(1); lg(6); vl(2); post(2); post(3); wr(2); wr(3)
    lg(10); vl(3); lg(6); vl(4); lg(4); e('s_barrier')
    sets=[(80,84,24,28),(32,36,40,44)]
    def rs(u,parts):
        s=sets[u&1]
        for p in parts:
            if p==0: rd(s[0],2,64*u)
            elif p==1: rd(s[1],3,64*u)
            else: rd(s[p],1,KX+((p-2)*4+u)*1024)
    def sc(u):
        s=sets[u&1]
        for t in range(3): mf(48+4*t,s[1+t],s[0],48+4*t if u else 0)
        e(f's_cmp_lg_u32 s32, 0\ns_cbranch_scc1 ch_nk{u}\nbuffer_store_dwordx4 {R(s[1])}, v1, s[4:7], s56 offen offset:{u*1024}\nch_nk{u}:')
    rs(0,[0,1,2,3]); lg(6); vl(5); rs(1,[2,3]); lg(6); vl(6); rs(1,[0,1]); rd(16,1,0); rd(20,1,1024)
    lg(6); sc(0); rs(2,[0,1,2,3]); lg(6); sc(1); rs(3,[0,1,2,3])
    vq=[(4,0),(5,0),(4,1),(5,1),(4,2),(5,2),(4,3),(5,3),(4,4),(5,4),(4,5),(5,5),(5,6)]
    ma=[16,20,16,24,28,80,84]
    def vr(i): T,kc=vq[i]; smf(48+4*T,ma[kc],wreg(T,kc))
    lg(8); vr(0); vr(1); rd(16,1,2048); lg(5); sc(2)
    for kc in range(3,7): rd(ma[kc],1,kc*1024)
    lg(5); sc(3); rdop(32,14336); rdop(40,14336+2048)
    vr(2); vr(3); lg(8); vr(4); vr(5)
    e('v_max3_f32 v60, v48, v49, v52\nv_max3_f32 v61, v53, v54, v55\nv_max3_f32 v60, v60, v56, v57\nv_max3_f32 v61, v61, v58, v59\nv_max_f32 v60, v60, v61\nv_mov_b32 v61, v60')
    lg(4); vr(6); e('v_permlane32_swap_b32 v61, v60'); vr(7); e('v_max_f32 v60, v60, v61\nv_mov_b32 v61, v60'); vr(8); vr(9)
    e('v_permlane16_swap_b32 v61, v60'); vr(10); e('v_max_f32 v60, v60, v61\nv_mul_f32 v60, s59, v60')
    sv=[48,49]+list(range(52,60))
    for i,x in enumerate(sv):
        e(f'v_fma_f32 v{x}, v{x}, s59, -v60')
        if i in (1,4): vr(11 if i==1 else 12)
    rdop(16,14336+4096); rdop(24,14336+6144)
    for x in sv: e(f'v_exp_f32 v{x}, v{x}')
    e('v_cvt_pk_bf16_f32 v50, v48, v49\nv_mov_b32 v51, 0')
    for d in range(4): e(f'v_cvt_pk_bf16_f32 v{60+d}, v{52+2*d}, v{53+2*d}')
    post(4); post(5)
    e('v_mov_b32 v65, 0\nv_mov_b32 v69, 0')
    mf(80,72,60,0); mf(84,76,60,0)
    e('''v_mfma_f32_16x16x16_bf16 v[80:83], v[64:65], v[50:51], v[80:83]
    v_mfma_f32_16x16x16_bf16 v[84:87], v[68:69], v[50:51], v[84:87]
    s_cmp_eq_u32 s21, 0
    s_cbranch_scc1 ch_nv
    buffer_store_dword v64, v11, s[4:7], s57 offen
    buffer_store_dword v68, v11, s[4:7], s57 offen offset:256
    ch_nv:
    s_cmp_eq_u32 s58, 63
    s_cbranch_scc0 ch_cont
    s_endpgm
    ch_cont:
    v_add_f32 v66, v48, v49
    v_add_f32 v67, v52, v53
    v_add_f32 v66, v66, v54
    v_add_f32 v67, v67, v55
    v_add_f32 v66, v66, v56
    v_add_f32 v67, v67, v57
    v_add_f32 v66, v66, v58
    v_add_f32 v67, v67, v59
    v_add_f32 v66, v66, v67''')
    xsum(66,67)
    e('v_rcp_f32 v66, v66')
    for b in (80,84): e(f'v_cndmask_b32 v{b}, v{b}, v{b+2}, s[30:31]\nv_cndmask_b32 v{b+1}, v{b+1}, v{b+3}, s[30:31]')
    for x in (80,81,84,85): e(f'v_mul_f32 v{x}, v{x}, v66')
    e('v_cvt_pk_bf16_f32 v70, v80, v81\nv_cvt_pk_bf16_f32 v71, v84, v85\nds_write_b64 v5, v[70:71]')
    for i in range(48,58): e(f'v_mov_b32 v{i}, 0')
    lg(0); e('s_barrier'); rd(80,1,OX); rd(84,1,OX+1024)
    for i in range(58,68): e(f'v_mov_b32 v{i}, 0')
    vxpf(); kxpf()
    wb=[32,40,16,24]
    for i in range(10):
        if i==0 or i>=4: lg({0:0,4:6,5:6,6:6,7:4,8:2,9:0}[i])
        smf(48+4*(i>>1),80+4*(i&1),R(wb[i&3],8))
        if i<6: rdop(wb[i&3],14336+(i+4)*2048)
    def fin(t,d):
        a=48+4*t; e(f'v_add_f32 v{a}, v{a}, v{a+1}\nv_add_f32 v{a+2}, v{a+2}, v{a+3}\nv_cvt_pk_bf16_f32 v{d}, v{a}, v{a+2}\nv_min_u32 v{d}, -2, v{d}')
    for t in range(4): fin(t,16+t)
    e('buffer_store_dwordx4 v[16:19], v6, s[4:7], s52 offen sc1'); fin(4,20); e('s_nop 1')
    for k in (1,2,3): e(f'v_mov_b32_dpp v{20+k}, v20 quad_perm:[{k},{k},{k},{k}] row_mask:0xf bank_mask:0xf')
    e('''buffer_store_dwordx4 v[20:23], v7, s[4:7], s52 offen sc1
    s_add_u32 s56, s56, 0x20000
    s_add_u32 s57, s57, 0x10000
    s_add_u32 s58, s58, 1
    s_branch ch_loop''')
```

```python
XN=0; WQ=0x300000; WK=0x800000; WV=0xD00000; WG=0x1200000; WU=0x1480000; WOD=0x1700000
QF=0x2000000; KF=0x3000000; VF=0x4000000; OH=0x5000000; KM=0x6800000; VM=0x7000000
P2=0x7400000; P1=0x74A0000; YB=0x9000000
KT=182
L=[]
def e(s):
    for x in s.split('\n'):
        x=x.strip()
        if x: L.append(x if x.endswith(':') else '    '+x)
KERN=[]
def begin(name,grid,lds,nv,acc):
    KERN.append((name,grid,lds,nv,acc))
    L.append(f'.globl {name}\n.p2align 8\n.type {name},@function\n{name}:')
    e(f's_cmp_ge_u32 s2, {grid}\ns_cbranch_scc0 {name}_go\ns_endpgm\n{name}_go:')
def srd(d,off,size):
    e(f's_load_dwordx2 s[{d}:{d+1}], s[0:1], {off}\ns_mov_b32 s{d+2}, {size}\ns_mov_b32 s{d+3}, 0x00020000')
def lanes():
    srd(4,104,0x10000000)
    e('''v_lshrrev_b32 v1, 6, v0
    v_and_b32 v0, 63, v0
    v_readfirstlane_b32 s3, v1
    v_lshlrev_b32 v1, 4, v0
    v_lshrrev_b32 v2, 4, v0
    v_and_b32 v3, 15, v0''')
def xsum(a,t,op='v_add_f32'):
    e(f'''v_mov_b32 v{t}, v{a}
    s_nop 1
    v_permlane32_swap_b32 v{t}, v{a}
    s_nop 1
    {op} v{a}, v{a}, v{t}
    v_mov_b32 v{t}, v{a}
    s_nop 1
    v_permlane16_swap_b32 v{t}, v{a}
    s_nop 1
    {op} v{a}, v{a}, v{t}''')
def udiv(d,s,c,t):
    m=(1<<32)//c+1
    e(f's_mov_b32 s{t}, {m}\ns_mul_hi_u32 s{d}, s{s}, s{t}')
def finish(path):
    hdr=open('parallel_sum__memory_aug_recurrent_mem_tr__glu_gated_geglu__prompt.s.ref').read().split('; Override')[0]
    for n,g,l,nv,acc in KERN: hdr+=f'; @launch kernel={n} grid=({g},1,1) block=(256,1,1) lds={l}\n'
    hdr+='.amdgcn_target "amdgcn-amd-amdhsa--gfx950"\n.text\n'
    t='\n.section .rodata,"a"\n'
    for n,g,l,nv,acc in KERN:
        t+=f'''.p2align 6
.amdhsa_kernel {n}
  .amdhsa_next_free_vgpr {nv}
  .amdhsa_next_free_sgpr 96
  .amdhsa_accum_offset {acc}
  .amdhsa_group_segment_fixed_size 0
  .amdhsa_kernarg_size 112
  .amdhsa_user_sgpr_count 2
  .amdhsa_user_sgpr_kernarg_segment_ptr 1
  .amdhsa_system_sgpr_workgroup_id_x 1
.end_amdhsa_kernel
'''
    open(path,'w').write(hdr+'\n'.join(L)+t)
```

```python
from common import *
def dma(nd,slot,sb):
    o=[]
    for i in range(nd): o.append(f's_add_u32 m0, s38, {slot*sb+i*1024}\ns_nop 0\nbuffer_load_dwordx4 v4, s[4:7], s{40+i} offen lds')
    return o
def gemm_pro(nt,nw,K):
    nd=(nt+nw)//2; sb=(nt+nw)*2048
    e(f's_mul_i32 s38, s3, {nd*1024}\nv_mov_b32 v4, v1\ns_lshr_b32 s36, s3, 1\ns_and_b32 s37, s3, 1')
    for s in range(4):
        for x in dma(nd,s,sb): e(x)
        e('v_add_u32 v4, 1024, v4')
    e(f's_mul_i32 s39, s36, {nt*1024}\nv_add_u32 v5, s39, v1\ns_mul_i32 s39, s37, {nw*1024}\ns_add_u32 s39, s39, {2*nt*1024}\nv_add_u32 v6, s39, v1')
    e(f'v_add_u32 v7, {2*sb}, v5\nv_add_u32 v8, {2*sb}, v6\ns_mov_b32 s35, {K}')
    for i in range(nt*nw*4): e(f'v_accvgpr_write_b32 a{i}, 0')
    e(f's_waitcnt vmcnt({3*nd})\ns_barrier')
    for x in reads(nt,nw,0,0): e(x)
def reads(nt,nw,slot,st):
    sb=(nt+nw)*2048; b=16+st*(nt+nw)*4; o=[]
    tr=[f'ds_read_b128 v[{b+4*i}:{b+4*i+3}], v{5+(slot&2)} offset:{(slot&1)*sb+i*1024}' for i in range(nt)]
    wr=[f'ds_read_b128 v[{b+4*nt+4*j}:{b+4*nt+4*j+3}], v{6+(slot&2)} offset:{(slot&1)*sb+j*1024}' for j in range(nw)]
    return tr+wr
def gemm_loop(tag,nt,nw,swap):
    nd=(nt+nw)//2; sb=(nt+nw)*2048
    e(f'{tag}_loop:')
    for u in range(4):
        e(f's_waitcnt vmcnt({2*nd}) lgkmcnt(0)\ns_barrier')
        fill=reads(nt,nw,(u+1)&3,(u+1)&1)+dma(nd,u,sb)+['v_add_u32 v4, 1024, v4']
        b=16+(u&1)*(nt+nw)*4; n=nt*nw; q=0
        for i in range(nt):
            for j in range(nw):
                T=f'v[{b+4*i}:{b+4*i+3}]'; W=f'v[{b+4*nt+4*j}:{b+4*nt+4*j+3}]'; c=(i*nw+j)*4
                A,B=(T,W) if swap else (W,T)
                e(f'v_mfma_f32_16x16x32_bf16 a[{c}:{c+3}], {A}, {B}, a[{c}:{c+3}]')
                m=i*nw+j+1
                while q<len(fill) and q*n<m*len(fill)*(1 if n<32 else 1.5): e(fill[q]); q+=1
        assert q==len(fill)
        if u&1: e(f's_sub_u32 s35, s35, 2\ns_cmp_eq_u32 s35, 0\n'+(f's_cbranch_scc1 {tag}_end' if u==1 else f's_cbranch_scc0 {tag}_loop'))
    e(f'{tag}_end:\ns_waitcnt vmcnt(0) lgkmcnt(0)\ns_barrier\ns_nop 7')
def rdacc(v,a):
    for r in range(4): e(f'v_accvgpr_read_b32 v{v+r}, a{a+r}')
def frag_store(a0,a1,n,sreg,off,fl=''):
    b=16+(n&3)*12
    rdacc(b,a0); rdacc(b+4,a1)
    for d in range(4): e(f'v_cvt_pk_bf16_f32 v{b+8+d}, v{b+2*d}, v{b+2*d+1}')
    e(f'buffer_store_dwordx4 v[{b+8}:{b+11}], v1, s[4:7], s{sreg} offen offset:{off} {fl}')
def epi_qk():
    for i in range(8):
        for u in range(4): frag_store((i*8+2*u)*4,(i*8+2*u+1)*4,u,30,u*1024)
        e('s_add_u32 s30, s30, 0x20000')
def epi_v():
    for sg in range(4):
        for j in range(8):
            frag_store((2*sg*8+j)*4,((2*sg+1)*8+j)*4,j,30,(j&3)*1024)
            if j&3==3: e(f's_add_u32 s30, s30, {4096 if j==3 else 0x40000-4096}')
def set_frags(tb,w0,w1,half):
    e(f's_mul_i32 s40, s3, {8*20480}\ns_add_u32 s40, s40, s{tb}\ns_cmp_eq_u32 s3, 2\ns_cselect_b32 s40, s{w0}, s40\ns_cmp_eq_u32 s3, 3\ns_cselect_b32 s40, s{w1}, s40')
    e(f's_mov_b32 s39, {4*20480}\ns_cmp_ge_u32 s3, 2\ns_cselect_b32 s39, {half}, s39\ns_add_u32 s44, s40, s39')
    for i in (1,2,3): e(f's_add_u32 s{40+i}, s40, {i*20480}\ns_add_u32 s{44+i}, s44, {i*20480}')
def kv():
    begin('kv_kernel',256,131072,512,256); lanes()
    e(f'''s_and_b32 s20, s2, 31
    s_lshr_b32 s21, s2, 5
    s_mul_i32 s22, s21, {16*20480}
    s_mul_i32 s23, s20, {8*20480}
    s_add_u32 s24, s23, {WV}
    s_add_u32 s23, s23, {WK}''')
    set_frags(22,23,24,4*20480)
    e('s_waitcnt lgkmcnt(0)')
    gemm_pro(8,8,20)
    e('s_lshl_b32 s30, s21, 21\ns_lshl_b32 s31, s36, 20\ns_add_u32 s30, s30, s31\ns_cmp_eq_u32 s37, 1\ns_cbranch_scc1 kv_v')
    gemm_loop('kv_k',8,8,0)
    e(f's_lshl_b32 s31, s20, 12\ns_add_u32 s30, s30, s31\ns_add_u32 s30, s30, {KF}')
    epi_qk(); e('s_endpgm\nkv_v:')
    gemm_loop('kv_vv',8,8,1)
    e(f's_lshl_b32 s31, s20, 13\ns_add_u32 s30, s30, s31\ns_add_u32 s30, s30, {VF}')
    epi_v(); e('s_endpgm')
def workers():
    e(f'''wk_next:
    s_cmp_ge_u32 s19, 240
    s_cbranch_scc0 wk_go
    s_endpgm
    wk_go:
    s_and_b32 s21, s19, 7
    s_lshr_b32 s20, s19, 3
    s_mul_i32 s22, s21, {16*20480}
    s_cmp_ge_u32 s19, 128
    s_cbranch_scc1 wk_gu
    s_mul_i32 s23, s20, {16*20480}
    s_add_u32 s23, s23, {WQ}
    s_add_u32 s24, s23, {8*20480}''')
    set_frags(22,23,24,4*20480)
    e(f'''s_branch wk_run
    wk_gu:
    s_sub_u32 s20, s20, 16
    s_mul_i32 s23, s20, {8*20480}
    s_add_u32 s23, s23, {WG}
    s_add_u32 s24, s23, {4*20480}''')
    set_frags(22,23,24,WU-WG)
    e('wk_run:')
    gemm_pro(8,8,20); gemm_loop('wk',8,8,0)
    e(f'''s_lshl_b32 s20, s20, 1
    s_add_u32 s20, s20, s37
    s_cmp_ge_u32 s19, 128
    s_cbranch_scc1 wk_egu
    s_lshl_b32 s30, s21, 21
    s_lshl_b32 s31, s36, 20
    s_add_u32 s30, s30, s31
    s_lshl_b32 s31, s20, 12
    s_add_u32 s30, s30, s31
    s_add_u32 s30, s30, {QF}''')
    epi_qk()
    e(f'''s_branch wk_done
    wk_egu:
    s_cmp_ge_u32 s20, 27
    s_cbranch_scc1 wk_done
    s_lshl_b32 s30, s21, 1
    s_add_u32 s30, s30, s36
    s_mul_i32 s30, s30, {8*KT*1024}
    s_lshl_b32 s31, s20, 11
    s_add_u32 s30, s30, s31
    s_add_u32 s30, s30, {OH+128*1024}
    s_mov_b32 s28, 0xc0135761
    v_mov_b32 v9, 0xbdd2d3e8''')
    for i in range(8):
        for u in range(2):
            b=16+u*32
            for x in range(2): rdacc(b+4*x,(i*8+2*u+x)*4); rdacc(b+8+4*x,(i*8+4+2*u+x)*4)
            for r in range(8): e(f'v_mul_f32 v{b+16+r}, v{b+r}, v{b+r}')
            for r in range(8): e(f'v_fma_f32 v{b+16+r}, v{b+16+r}, v9, s28')
            for r in range(8): e(f'v_mul_f32 v{b+16+r}, v{b+16+r}, v{b+r}')
            for r in range(8): e(f'v_exp_f32 v{b+16+r}, v{b+16+r}')
            for r in range(8): e(f'v_add_f32 v{b+16+r}, 1.0, v{b+16+r}')
            for r in range(8): e(f'v_rcp_f32 v{b+16+r}, v{b+16+r}')
            for r in range(8): e(f'v_mul_f32 v{b+r}, v{b+r}, v{b+16+r}')
            for r in range(8): e(f'v_mul_f32 v{b+r}, v{b+r}, v{b+8+r}')
            for d in range(4): e(f'v_cvt_pk_bf16_f32 v{b+24+d}, v{b+2*d}, v{b+2*d+1}')
            e(f'buffer_store_dwordx4 v[{b+24}:{b+27}], v1, s[4:7], s30 offen offset:{u*1024}')
        e(f's_add_u32 s30, s30, {KT*1024}')
    e('wk_done:\ns_add_u32 s19, s19, 192\ns_waitcnt vmcnt(0)\ns_branch wk_next')
def final():
    begin('final_kernel',160,49152,128,64); lanes()
    srd(8,0,2621440); srd(12,88,2621440)
    e(f'''s_and_b32 s21, s2, 31
    s_lshr_b32 s20, s2, 5
    s_mul_i32 s22, s21, {4*KT*1024}
    s_add_u32 s22, s22, {OH}
    s_mul_i32 s23, s20, {8*KT*1024}
    s_add_u32 s23, s23, {WOD-4*KT*1024}''')
    for i in range(3):
        e(f's_mul_i32 s39, s3, 3\ns_add_u32 s39, s39, {i}\ns_cmp_lt_u32 s39, 4\ns_cselect_b32 s{40+i}, s22, s23\ns_mul_i32 s39, s39, {KT*1024}\ns_add_u32 s{40+i}, s{40+i}, s39')
    e('s_waitcnt lgkmcnt(0)')
    gemm_pro(2,4,KT); gemm_loop('fin',2,4,0)
    e(f'''s_lshl_b32 s30, s21, 1
    s_add_u32 s30, s30, s36
    s_mul_i32 s30, s30, {32*1280}
    s_lshl_b32 s31, s20, 1
    s_add_u32 s31, s31, s37
    s_lshl_b32 s31, s31, 7
    s_add_u32 s30, s30, s31
    s_add_u32 s31, s30, {16*1280}
    v_mul_u32_u24 v4, 1280, v3
    v_lshl_add_u32 v4, v2, 5, v4
    s_mov_b32 s22, 0xffff0000''')
    for i in range(2):
        for x in range(2): e(f'buffer_load_dwordx4 v[{16+8*i+4*x}:{19+8*i+4*x}], v4, s[8:11], s{30+i} offen offset:{16*x}')
    for i in range(2):
        for j in range(4): rdacc(32+4*j,(i*4+j)*4)
        e(f's_waitcnt vmcnt({2-2*i})')
        for d in range(8):
            cb=d>>2; th=(d>>1)&1; hf=d&1; r=2*hf+cb; x=16+8*i+d
            e(f'v_lshlrev_b32 v5, 16, v{x}\nv_and_b32 v6, s22, v{x}\nv_add_f32 v5, v5, v{32+8*th+r}\nv_add_f32 v6, v6, v{36+8*th+r}\nv_cvt_pk_bf16_f32 v{x}, v5, v6')
        for x in range(2): e(f'buffer_store_dwordx4 v[{16+8*i+4*x}:{19+8*i+4*x}], v4, s[12:15], s{30+i} offen offset:{16*x}')
    e('s_endpgm')
```

```python
from common import *
def pack(tag,karg,size,stride,ncg,cg0,dord,cmap,dst,tstride,ks0):
    e(f'{tag}:')
    srd(8,karg,size)
    udiv(21,20,ncg,23)
    e(f's_mul_i32 s22, s21, {ncg}\ns_sub_u32 s22, s20, s22\ns_mul_i32 s24, s21, {32*stride}\ns_lshl_b32 s25, s22, 7\ns_add_u32 s24, s24, s25\ns_add_u32 s24, s24, {cg0*128}')
    e(f'v_mul_u32_u24 v4, {(4 if dord else 8)*stride}, v2\nv_lshl_add_u32 v4, v3, 3, v4\ns_waitcnt lgkmcnt(0)')
    for t in range(8):
        r=(16*(t>>2)+(t&3)) if dord else t
        e(f's_add_u32 s25, s24, {r*stride}\nbuffer_load_dwordx2 v[{16+2*t}:{17+2*t}], v4, s[8:11], s25 offen')
    e(f's_mov_b32 s26, {tstride}\ns_mul_i32 s27, s22, {4*tstride}\ns_lshl_b32 s28, s21, 10\ns_add_u32 s27, s27, s28\ns_add_u32 s27, s27, {dst+ks0*1024}')
    e('v_lshlrev_b32 v5, 8, v2\nv_lshrrev_b32 v6, 2, v3\nv_and_b32 v7, 3, v3')
    if cmap==0:
        e('v_mul_lo_u32 v6, v6, s26\nv_lshl_add_u32 v5, v7, 6, v5\nv_add_u32 v5, v5, v6'); offs=[(0,16*c) for c in range(4)]
    elif cmap==1:
        e('v_lshl_add_u32 v5, v6, 6, v5\nv_lshrrev_b32 v6, 1, v7\nv_lshl_add_u32 v5, v6, 4, v5\nv_and_b32 v7, 1, v7\nv_lshlrev_b32 v7, 1, v7\nv_mul_lo_u32 v7, v7, s26\nv_add_u32 v5, v5, v7')
        offs=[((c&1),32*(c>>1)) for c in range(4)]
    else:
        e('v_mul_lo_u32 v6, v6, s26\nv_lshl_add_u32 v5, v7, 5, v5\nv_add_u32 v5, v5, v6'); offs=[(0,128*(c>>1)+16*(c&1)) for c in range(4)]
    e(f's_add_u32 s28, s27, s26\ns_mov_b32 s30, 0x05040100\ns_mov_b32 s31, 0x07060302\ns_waitcnt vmcnt(0)')
    for c in range(4):
        for d in range(4): e(f'v_perm_b32 v{32+4*c+d}, v{16+2*(2*d+1)+(c>>1)}, v{16+4*d+(c>>1)}, s{30+(c&1)}')
        e(f'buffer_store_dwordx4 v[{32+4*c}:{35+4*c}], v5, s[4:7], s{27+offs[c][0]} offen offset:{offs[c][1]}')
    e('s_endpgm')
def prep():
    T20=20*1024; TK=KT*1024
    jobs=[('pk_k',24,5242880,8192,64,0,0,0,WK,T20,0,1280),('pk_v',32,5242880,8192,64,0,0,0,WV,T20,0,1280),
          ('pk_q',16,5242880,8192,64,0,0,0,WQ,T20,0,1280),('pk_o',40,5242880,1280,10,0,1,1,WOD,TK,0,1280),
          ('pk_s',40,5242880,1280,2,8,1,2,WOD+40*TK,TK,0,256),('pk_g',64,2211840,3456,27,0,0,0,WG,T20,0,540),
          ('pk_u',72,2211840,3456,27,0,0,0,WU,T20,0,540),('pk_d',80,2211840,1280,10,0,1,1,WOD,TK,128,540)]
    roles=[('pr_ln',128),('pr_m0',4)]+[(j[0],j[-1]) for j in jobs]+[('pr_fill',1300)]
    tot=sum(r[1] for r in roles); assert tot%4==0
    begin('prep_kernel',tot//4,0,104,104)
    lanes()
    e('s_lshl_b32 s20, s2, 2\ns_add_u32 s20, s20, s3')
    for n,c in roles: e(f's_cmp_lt_u32 s20, {c}\ns_cbranch_scc1 {n}\ns_sub_u32 s20, s20, {c}')
    e('s_endpgm')
    for j in jobs: pack(*j[:-1])
    e(f'pr_fill:\ns_lshl_b32 s21, s20, 14\ns_add_u32 s21, s21, {P2+10240}\nv_mov_b32 v4, -1\nv_mov_b32 v5, -1\nv_mov_b32 v6, -1\nv_mov_b32 v7, -1\ns_waitcnt lgkmcnt(0)')
    for i in range(16):
        e(f'buffer_store_dwordx4 v[4:7], v1, s[4:7], s21 offen offset:{(i&3)*1024}')
        if i&3==3: e('s_add_u32 s21, s21, 4096')
    e('s_endpgm\npr_m0:\ns_cmp_eq_u32 s20, 0\ns_cbranch_scc1 pr_m1\ns_endpgm\npr_m1:')
    srd(8,8,10240)
    e('v_lshrrev_b32 v4, 1, v3\nv_mul_u32_u24 v4, 1280, v4\nv_lshl_add_u32 v4, v2, 5, v4\nv_and_b32 v5, 1, v3\nv_lshl_add_u32 v4, v5, 2, v4\ns_waitcnt lgkmcnt(0)')
    for kc in range(10):
        for d in range(4): e(f'buffer_load_dword v{16+4*kc+d}, v4, s[8:11], 0 offen offset:{128*kc+8*d}')
    e('s_waitcnt vmcnt(0)')
    for i in range(40): e(f'v_min_u32 v{16+i}, -2, v{16+i}')
    for kc in range(10): e(f's_mov_b32 s21, {P2+kc*1024}\nbuffer_store_dwordx4 v[{16+4*kc}:{19+4*kc}], v1, s[4:7], s21 offen')
    e('s_endpgm\npr_ln:')
    srd(8,0,2621440)
    e('v_mul_u32_u24 v4, 1280, v3\nv_lshl_add_u32 v4, v2, 4, v4\ns_mul_i32 s21, s20, 20480\ns_mov_b32 s22, 0xffff0000\ns_waitcnt lgkmcnt(0)')
    for k in range(20): e(f'buffer_load_dwordx4 v[{16+4*k}:{19+4*k}], v4, s[8:11], s21 offen offset:{64*k}')
    e('v_mov_b32 v8, 0\nv_mov_b32 v9, 0\ns_waitcnt vmcnt(0)')
    for i in range(80): e(f'v_lshlrev_b32 v5, 16, v{16+i}\nv_and_b32 v6, s22, v{16+i}\nv_add_f32 v8, v8, v5\nv_add_f32 v9, v9, v6')
    e('v_add_f32 v8, v8, v9'); xsum(8,9)
    e('v_mul_f32 v8, 0x3acccccd, v8\nv_mov_b32 v10, 0\nv_mov_b32 v11, 0')
    for i in range(80): e(f'v_lshlrev_b32 v5, 16, v{16+i}\nv_and_b32 v6, s22, v{16+i}\nv_sub_f32 v5, v5, v8\nv_sub_f32 v6, v6, v8\nv_fmac_f32 v10, v5, v5\nv_fmac_f32 v11, v6, v6')
    e('v_add_f32 v10, v10, v11'); xsum(10,9)
    e('''v_mul_f32 v10, 0x3acccccd, v10
    v_cvt_pk_bf16_f32 v8, v8, v10
    v_and_b32 v10, s22, v8
    v_lshlrev_b32 v8, 16, v8
    v_add_f32 v10, 0x3727c5ac, v10
    v_cvt_pk_bf16_f32 v10, v10, v10
    v_and_b32 v10, s22, v10
    v_sqrt_f32 v10, v10
    s_nop 0
    v_cvt_pk_bf16_f32 v10, v10, v10
    v_and_b32 v10, s22, v10
    v_rcp_f32 v10, v10
    s_nop 0''')
    for i in range(80):
        e(f'''v_lshlrev_b32 v5, 16, v{16+i}
        v_and_b32 v6, s22, v{16+i}
        v_sub_f32 v5, v5, v8
        v_sub_f32 v6, v6, v8
        v_cvt_pk_bf16_f32 v6, v5, v6
        v_lshlrev_b32 v5, 16, v6
        v_and_b32 v6, s22, v6
        v_mul_f32 v5, v5, v10
        v_mul_f32 v6, v6, v10
        v_cvt_pk_bf16_f32 v{16+i}, v5, v6''')
        if i&3==3:
            k=i>>2
            e(f'buffer_store_dwordx4 v[{16+4*k}:{19+4*k}], v1, s[4:7], s21 offen offset:{(k&3)*1024}')
            if k&3==3: e('s_add_u32 s21, s21, 4096')
    e('s_endpgm')
```

```python
import sys
from common import *
import prep,gemm,chain,attn
for a in sys.argv[2:]:
    k,v=a.split('='); setattr(chain,k,int(v))
prep.prep(); gemm.kv()
begin('main_kernel',256,163840,512,256); lanes()
e('s_cmp_ge_u32 s2, 64\ns_cbranch_scc0 ch_entry\ns_sub_u32 s19, s2, 64\ns_waitcnt lgkmcnt(0)')
gemm.workers()
e('ch_entry:'); chain.chain()
attn.attn(); gemm.final()
finish(sys.argv[1] if len(sys.argv)>1 else 'parallel_sum__memory_aug_recurrent_mem_tr__glu_gated_geglu__prompt.s')
```

```python
from common import *
from chain import R,mf
def attn(ph):
    if ph==0: e(f'''s_lshl_b32 s20, s16, 2
    s_lshl_b32 s21, s18, 5
    s_add_u32 s20, s20, s21
    s_add_u32 s20, s20, s3
    s_and_b32 s21, s20, 31
    s_lshr_b32 s22, s20, 5
    s_lshl_b32 s23, s22, 18
    s_lshl_b32 s24, s21, 12
    s_add_u32 s23, s23, s24
    s_add_u32 s40, s23, {QF}
    s_add_u32 s41, s23, {QF+0x20000}
    s_add_u32 s42, s23, {KF}
    s_add_u32 s43, s23, {KF+0x20000}
    s_lshl_b32 s44, s20, 12
    s_add_u32 s44, s44, {KM}
    s_lshl_b32 s45, s20, 13
    s_add_u32 s45, s45, {VF}
    s_add_u32 s46, s45, 4096
    s_lshl_b32 s47, s20, 11
    s_add_u32 s47, s47, {VM}
    s_mul_i32 s48, s22, {2*KT*1024}
    s_add_u32 s48, s48, s24
    s_add_u32 s48, s48, {OH}
    s_add_u32 s49, s48, {KT*1024}
    s_mov_b32 s59, 0x3e0293ee
    v_lshlrev_b32 v4, 2, v0
    v_lshlrev_b32 v5, 2, v2
    v_mov_b32 v6, 0xf149f2ca
    s_waitcnt lgkmcnt(0)''')
    for i in ([16,17,18,19] if ph else list(range(16))+list(range(20,28))): e(f'buffer_load_dwordx4 {R(16+4*i)}, v1, s[4:7], s{40+(i>>2)} offen offset:{(i&3)*1024}')
    if ph==0: return
    for i in range(8): e(f'buffer_load_dword v{128+2*i}, v4, s[4:7], s47 offen offset:{i*256}\nv_mov_b32 v{129+2*i}, 0')
    for r in range(4): e(f'v_add_u32 v7, {r}, v5\nv_cmp_le_u32 s[{60+2*r}:{61+2*r}], v7, v3')
    e('s_waitcnt vmcnt(8)')
    tiles=[(144,80,0),(148,48,0),(152,80,1),(156,48,1),(160,64,1)]
    for u in range(4):
        for a,k,q in tiles: mf(a,k+4*u,16+16*q+4*u,a if u else 0)
    e('s_nop 7')
    for q in range(2):
        m=144+8*q; dg=148+12*q; sv=[m,m+1]+list(range(m+4,dg+4)); P=16+16*q
        for r in range(4): e(f'v_cndmask_b32 v{dg+r}, v6, v{dg+r}, s[{60+2*r}:{61+2*r}]')
        e(f'v_max_f32 v8, v{m}, v{m+1}')
        for i in range(2,len(sv),2): e(f'v_max3_f32 v8, v8, v{sv[i]}, v{sv[i+1]}')
        xsum(8,9,'v_max_f32'); e('v_mul_f32 v8, s59, v8')
        for x in sv: e(f'v_fma_f32 v{x}, v{x}, s59, -v8')
        for x in sv: e(f'v_exp_f32 v{x}, v{x}')
        e(f'v_cvt_pk_bf16_f32 v{P+4}, v{m}, v{m+1}\nv_mov_b32 v{P+5}, 0')
        for d in range(4): e(f'v_cvt_pk_bf16_f32 v{P+d}, v{m+4+2*d}, v{m+5+2*d}' if (q or d<2) else f'v_mov_b32 v{P+d}, 0')
        e(f'v_add_f32 v{10+q}, v{sv[0]}, v{sv[1]}')
        for x in sv[2:]: e(f'v_add_f32 v{10+q}, v{10+q}, v{x}')
        xsum(10+q,9); e(f'v_rcp_f32 v{10+q}, v{10+q}')
    e('s_waitcnt vmcnt(0)')
    for q in range(2):
        P=16+16*q
        for t in range(8): mf(48+4*t,96+4*t,P,0)
        for t in range(8): e(f'v_mfma_f32_16x16x16_bf16 {R(48+4*t)}, {R(128+2*t,2)}, {R(P+4,2)}, {R(48+4*t)}')
        e('s_nop 1')
        for u in range(4):
            for r in range(8): e(f'v_mul_f32 v{48+8*u+r}, v{48+8*u+r}, v{10+q}')
            b=(80 if q==0 else 144)+4*u
            for d in range(4): e(f'v_cvt_pk_bf16_f32 v{b+d}, v{48+8*u+2*d}, v{49+8*u+2*d}')
            e(f'buffer_store_dwordx4 {R(b)}, v1, s[4:7], s{48+q} offen offset:{u*1024} sc1')
```

```python
from common import *
SL1=0; SL2=0; SL3=0; DBG=0; LOC=1; PL=1; PF=1
def pst(d,v,n,sr=52): e(f's_cmp_eq_u32 s15, 32\ns_cbranch_scc1 ch_l{n}\nbuffer_store_dwordx4 {R(d)}, v{v}, s[4:7], s{sr} offen sc1\ns_branch ch_m{n}\nch_l{n}:\nbuffer_store_dwordx4 {R(d)}, v{v}, s[4:7], s{sr} offen\nch_m{n}:')
def TS(i):
    if DBG: e(f's_waitcnt lgkmcnt(0)\ns_memtime s[60:61]\ns_waitcnt lgkmcnt(0)\ns_sub_u32 s62, s60, s63\ns_add_u32 s{64+i}, s{64+i}, s62\ns_mov_b32 s63, s60')
PP=0; KVF='sc1'; SLW=32; ST=0
MEM=0; KX=10240; QK=18432; OX=0; WB=22784; DUM=162048
loc=[(T,i) for i in range(5) for T in range(6)]
lds_ops=[o for p,o in enumerate(loc) if p%2==1 or p in (10,20)]
reg_ops=[o for o in loc if o not in lds_ops]+[(T,i) for i in range(5,10) for T in range(6)]+[('o',x) for x in range(10)]
def wreg(o,h=None):
    i=reg_ops.index(o); p,b=('a',8*i) if i<32 else ('v',88+8*(i-32))
    return f'{p}[{b}:{b+7}]' if h is None else f'{p}[{b+4*h}:{b+4*h+3}]'
def R(b,n=4): return f'v[{b}:{b+n-1}]'
def smf(acc,A,B): e(f'v_smfmac_f32_16x16x64_bf16 {R(acc)}, {R(A)}, {B}, v4')
def mf(d,a,b,c): e(f'v_mfma_f32_16x16x32_bf16 {R(d)}, {R(a)}, {R(b)}, {c if c==0 else R(c)}')
def rd(d,av,off): e(f'ds_read_b128 {R(d)}, v{av} offset:{off}')
def rdop(d,off): rd(d,10,off); rd(d+4,10,off+1024)
def lg(n): e(f's_waitcnt lgkmcnt({n})')
def retry(tag,t,re):
    e(f'v_cmp_eq_u32 vcc, -1, v{t}\ns_cbranch_vccz {tag}_ok\ns_sub_u32 s34, s34, 1\ns_cbranch_scc1 ch_end\n{re}\ns_branch {tag}\n{tag}_ok:')
def ld5(sr): return f'buffer_load_dwordx4 v[52:55], v8, s[4:7], s{sr} offen sc1\nbuffer_load_dword v11, v5, s[4:7], s{sr} offen sc1'
def chk5(tag,sr,off):
    e(f'{tag}:\ns_waitcnt vmcnt(0)\nv_max3_u32 v36, v52, v53, v54\nv_max3_u32 v36, v36, v55, v11'); retry(tag,36,ld5(sr))
    e(f'ds_write_b128 v8, v[52:55] offset:{off}\nds_write_b32 v5, v11 offset:{off}')
def chain():
    if DBG: e('s_memtime s[76:77]')
    e('s_lshr_b32 s20, s2, 3\ns_and_b32 s21, s2, 1' if PL else 's_lshr_b32 s20, s2, 4\ns_lshl_b32 s20, s20, 3\ns_and_b32 s21, s2, 7\ns_add_u32 s20, s20, s21\ns_bfe_u32 s21, s2, 0x10003')
    e(f'''    s_mul_i32 s18, s21, 20
    s_add_u32 s18, s18, s20
    s_getreg_b32 s16, hwreg(HW_REG_XCC_ID)
    s_and_b32 s16, s16, 7
    s_and_b32 s23, s16, 3
    s_lshl_b32 s23, s23, 3
    s_lshl_b32 s23, 1, s23
    s_and_b32 s24, s16, 4
    s_lshl_b32 s17, s21, 6
    s_add_u32 s17, s17, 128
    s_add_u32 s24, s24, s17
    v_mov_b32 v16, s23
    v_lshlrev_b32 v17, 8, v0
    s_cmp_eq_u32 s3, 0
    s_cselect_b32 s24, s24, 256
    s_waitcnt lgkmcnt(0)
    buffer_atomic_add v16, v17, s[72:75], s24 offen
    s_lshl_b32 s22, s20, 3
    s_lshl_b32 s23, s3, 1
    s_add_u32 s22, s22, s23
    s_mul_i32 s22, s22, 20480
    s_mul_i32 s38, s3, 34816
    s_add_u32 s38, s38, {WB}
    s_waitcnt lgkmcnt(0)''')
    e('s_lshl_b32 s23, s21, 13\ns_add_u32 s40, s22, s23\ns_sub_u32 s42, s22, s23\ns_add_u32 s42, s42, 8192\ns_lshl_b32 s23, s21, 11\ns_add_u32 s41, s22, s23\ns_add_u32 s41, s41, 16384\ns_sub_u32 s43, s22, s23\ns_add_u32 s43, s43, 18432')
    e(f's_lshl_b32 s24, s21, 2\ns_add_u32 s24, s24, s3\ns_lshl_b32 s25, s20, 12\ns_add_u32 s25, s25, {WOD}\ns_mul_i32 s44, s24, {4*KT*1024}\ns_add_u32 s44, s44, s25\ns_mul_i32 s45, s24, {KT*1024}\ns_add_u32 s45, s45, s25')
    def src(o):
        T,i=o
        if T=='o': return f's_add_u32 s23, s44, {(i>>1)*KT*1024+(i&1)*2048}' if i<8 else f's_add_u32 s23, s45, {40*KT*1024+(i&1)*2048}'
        return f's_add_u32 s23, s{40+2*(i//5)+(i%5==4)}, {[WQ,WK,WV][T>>1]+(T&1)*20480+(i%5%4)*2048}'
    for i,o in enumerate(lds_ops):
        e(src(o)+f'\ns_add_u32 m0, s38, {i*2048}\ns_nop 0')
        for h in range(2): e(f'buffer_load_dwordx4 v1, s[4:7], s23 offen offset:{h*1024} lds')
    for o in reg_ops:
        e(src(o))
        for h in range(2): e(f'buffer_load_dwordx4 {wreg(o,h)}, v1, s[4:7], s23 offen offset:{h*1024}')
        e('s_waitcnt vmcnt(40)')
    e('s_mov_b32 s26, s21\ns_mov_b32 s27, s20'); udiv(28,27,5,29)
    e(f'''s_mul_i32 s29, s28, 5
    s_sub_u32 s29, s27, s29
    v_mov_b32 v80, v2
    v_mov_b32 v81, v3
    v_mov_b32 v82, v0
    s_mov_b32 s33, 0x7ffffff0
    v_mov_b32 v87, s33
    v_lshlrev_b32 v79, 2, v82
    v_add_u32 v10, s38, v1
    s_lshl_b32 s23, s3, 6
    s_add_u32 s23, s23, {QK}
    v_mul_u32_u24 v0, 544, v80
    v_lshrrev_b32 v83, 2, v81
    v_lshl_add_u32 v0, v83, 4, v0
    v_and_b32 v84, 3, v81
    v_lshl_add_u32 v0, v84, 1, v0
    v_add_u32 v0, s23, v0
    v_and_b32 v86, 1, v81
    v_lshl_add_u32 v85, v83, 1, v86
    v_cmp_eq_u32 vcc, 1, v86
    v_mov_b32 v4, 0x44444444
    v_mov_b32 v5, 0xeeeeeeee
    v_cndmask_b32 v4, v4, v5, vcc
    v_cmp_le_u32 vcc, 2, v84
    v_mul_u32_u24 v2, 272, v85
    v_lshl_add_u32 v2, v80, 4, v2
    v_add_u32 v2, {QK}, v2
    v_add_u32 v3, 2176, v2
    v_cndmask_b32 v2, v3, v2, vcc
    s_lshl_b32 s23, s3, 9
    v_lshrrev_b32 v3, 1, v80
    v_lshlrev_b32 v3, 8, v3
    v_lshl_add_u32 v3, v85, 5, v3
    v_and_b32 v6, 1, v80
    v_lshl_add_u32 v3, v6, 3, v3
    v_add_u32 v3, s23, v3
    v_mov_b32 v6, {DUM}
    v_lshl_add_u32 v6, v82, 3, v6
    v_cndmask_b32 v3, v6, v3, vcc
    s_lshl_b32 s23, s3, 8
    s_add_u32 s23, s23, 4096
    v_add_u32 v5, s23, v79
    s_lshl_b32 s23, s3, 10
    v_add_u32 v8, s23, v1
    s_mul_i32 s23, s21, 20
    s_mul_i32 s24, s3, 5
    s_add_u32 s23, s23, s24
    s_lshl_b32 s23, s23, 13
    s_lshl_b32 s24, s20, 8
    s_add_u32 s23, s23, s24
    v_lshlrev_b32 v6, 13, v80
    v_lshl_add_u32 v6, v81, 4, v6
    v_add_u32 v6, s23, v6
    s_add_u32 s23, s23, 0x8000
    v_add_u32 v7, s23, v79
    v_cmp_eq_u32 vcc, 0, v84
    s_lshl_b32 s18, s18, 13
    s_nop 0
    v_cndmask_b32 v7, v87, v7, vcc
    v_bfe_u32 v9, v81, 1, 1
    v_lshlrev_b32 v9, 4, v9
    v_lshl_add_u32 v9, v80, 5, v9
    s_cmp_eq_u32 s29, 4
    s_cselect_b32 s23, 6, 8
    v_lshlrev_b32 v12, s23, v83
    v_add_u32 v9, v9, v12
    s_lshl_b32 s23, s28, 10
    s_lshl_b32 s24, s29, 6
    s_add_u32 s23, s23, s24
    s_lshl_b32 s24, s28, 8
    s_add_u32 s24, s24, 4096
    s_cmp_eq_u32 s29, 4
    s_cselect_b32 s23, s24, s23
    v_add_u32 v9, s23, v9
    v_and_b32 v12, 33, v82
    v_cmp_eq_u32 vcc, 0, v12
    s_mul_i32 s23, s21, 5120
    s_add_u32 s50, s23, {P2}
    v_cndmask_b32 v9, v87, v9, vcc
    s_sub_u32 s51, {P2+15360}, s23
    s_mov_b32 s52, {P1}
    v_mov_b32 v12, 0x3f803f80
    v_mov_b32 v13, v12
    v_mov_b32 v14, v12
    v_mov_b32 v15, v12
    s_lshr_b32 s23, s3, 1
    s_lshl_b32 s23, s23, 17
    s_and_b32 s24, s3, 1
    s_lshl_b32 s24, s24, 11
    s_add_u32 s23, s23, s24
    s_lshl_b32 s24, s20, 12
    s_add_u32 s54, s23, s24
    s_add_u32 s54, s54, {KF}
    s_add_u32 s56, s24, {KM}
    s_lshl_b32 s23, s20, 13
    s_lshl_b32 s24, s3, 11
    s_add_u32 s55, s23, s24
    s_lshr_b32 s57, s55, 2
    s_add_u32 s55, s55, {VF}
    s_add_u32 s57, s57, {VM}
    s_add_u32 s39, s24, {KX}
    s_add_u32 s32, s3, s21
    s_mov_b32 s58, 0
    s_mov_b32 s59, 0x3e0293ee
    s_mov_b32 s34, 400000''')
    def kxpf(): e('s_mov_b32 m0, s39\ns_nop 0\nbuffer_load_dwordx4 v1, s[4:7], s54 offen lds\nbuffer_load_dwordx4 v1, s[4:7], s54 offen offset:1024 lds\ns_add_u32 s54, s54, 0x40000')
    def vxpf(): e('buffer_load_dwordx4 v[80:83], v1, s[4:7], s55 offen\nbuffer_load_dwordx4 v[84:87], v1, s[4:7], s55 offen offset:1024\ns_add_u32 s55, s55, 0x40000')
    def kvw(tag,pre,ld,cmp): e(f'{pre}\n{tag}:\nbuffer_load_dword v17, v16, {ld} offen sc1\ns_waitcnt vmcnt(0)\n{cmp}, v17\ns_cbranch_vccz {tag}_ok\ns_sleep 8\ns_sub_u32 s34, s34, 1\ns_cbranch_scc0 {tag}\ns_endpgm\n{tag}_ok:')
    kvw('ch_k0',f'v_lshlrev_b32 v16, 2, v1\nv_min_u32 v16, {15*64}, v16\ns_lshl_b32 s23, s20, 11\ns_add_u32 s23, s23, {FB}','s[4:7], s23','v_cmp_eq_u32 vcc, -1'); kxpf(); vxpf()
    e('''v_mov_b32 v17, 0
    ch_xp:
    buffer_load_dwordx2 v[18:19], v17, s[72:75], s17 offen sc1
    s_waitcnt vmcnt(0)
    v_sad_u8 v20, v18, 0, 0
    v_sad_u8 v20, v19, 0, v20
    v_cmp_eq_u32 vcc, 32, v20
    s_cbranch_vccnz ch_xok
    s_sleep 8
    s_sub_u32 s34, s34, 1
    s_cbranch_scc0 ch_xp
    s_endpgm
    ch_xok:
    v_readfirstlane_b32 s24, v18
    v_readfirstlane_b32 s25, v19
    s_lshl_b32 s23, s16, 3
    s_lshr_b64 s[24:25], s[24:25], s23
    s_and_b32 s15, s24, 0xff''')
    if not LOC: e('s_mov_b32 s15, 0')
    if DBG:
        e('s_waitcnt vmcnt(0)'); TS(0)
        e('s_sub_u32 s71, s60, s76')
        for i in range(7): e(f's_mov_b32 s{64+i}, 0')
    stamp('s81','s_mov_b32 s81, 140\ns_cmp_eq_u32 s2, 9'); e('ch_loop:'); TS(6)
    for i in range(56,80): e(f'v_mov_b32 v{i}, 0')
    e('s_cmp_lg_u32 s3, 3\ns_cbranch_scc1 ch_nored\ns_cmp_eq_u32 s58, 0\ns_cbranch_scc1 ch_nored\ns_cmp_ge_u32 s20, 20\ns_cbranch_scc1 ch_nored')
    e('v_bfe_u32 v52, v1, 4, 2\nv_bfe_u32 v53, v1, 6, 1\nv_lshlrev_b32 v53, 4, v53\nv_mov_b32 v54, 0x3f80\nv_lshlrev_b32 v53, v53, v54\ns_add_u32 s46, s52, s18\ns_add_u32 s47, s46, 4096\ns_add_u32 s49, s50, 10240')
    for d in range(4): e(f'v_cmp_eq_u32 vcc, {d}, v52\ns_nop 1\nv_cndmask_b32 v{48+d}, 0, v53, vcc')
    if SL1: e(f's_sleep {SL1}')
    e('ch_p1:')
    for x in range(8): e(f'buffer_load_dwordx4 {R(16+4*x)}, v1, s[4:7], s{46+(x>>2)} offen offset:{(x&3)*1024} sc1')
    for x in range(8):
        e(f's_waitcnt vmcnt({7-x})'); mf(52,48,16+4*x,52 if x else 0); b=16+4*x
        e(f'v_max3_u32 v11, v{b}, v{b+1}, '+('v11' if x else f'v{b+1}')+f'\nv_max3_u32 v11, v{b+2}, v{b+3}, v11')
    retry('ch_p1',11,''); TS(0)
    e('''s_nop 3
    v_cvt_pk_bf16_f32 v52, v52, v53
    v_cvt_pk_bf16_f32 v53, v54, v55
    v_min_u32 v52, -2, v52
    v_min_u32 v53, -2, v53
    s_nop 1
    v_mov_b32_dpp v54, v52 quad_perm:[1,1,3,3] row_mask:0xf bank_mask:0xf
    v_mov_b32_dpp v55, v53 quad_perm:[1,1,3,3] row_mask:0xf bank_mask:0xf
    buffer_store_dwordx4 v[52:55], v9, s[4:7], s49 offen sc1''')
    pst(52,9,2,50)
    e(f's_sleep {SL3}\ns_branch ch_pl\nch_nored:\ns_cmp_lg_u32 s58, 24\ns_cbranch_scc1 ch_sl'); kvw('ch_k1','v_lshrrev_b32 v16, 2, v1\nv_min_u32 v16, 28, v16','s[72:75], 0','v_cmp_ne_u32 vcc, 0x1e0020'); e(f's_branch ch_pl\nch_sl:\ns_sleep {SL2}\nch_pl:'); e(ld5(50)); chk5('ch_p2',50,0); TS(1)
    rdop(36,0); rdop(44,2048); lg(4); e('s_barrier')
    for i in range(5): rd(16+4*i,1,i*1024)
    e('s_cmp_lg_u32 s58, 0\ns_cselect_b32 s23, 0x50000, 0\ns_add_u32 s52, s52, s23\ns_add_u32 s50, s50, 20480')
    lg(4)
    for p,o in enumerate(loc):
        if p==PP: e(ld5(51))
        if o in lds_ops:
            k=lds_ops.index(o)
            if k>=2: lg(2 if k<16 else 0)
            smf(56+4*o[0],16+4*o[1],R(36+8*(k&1),8))
            if k+2<17: rdop(36+8*(k&1),(k+2)*2048)
        else: smf(56+4*o[0],16+4*o[1],wreg(o))
    if PP>=30: e(f's_sleep {PP-30}\n'+ld5(51))
    chk5('ch_p3',51,5120); lg(0); e('s_barrier'); TS(2)
    for i in range(5): rd(16+4*i,1,5120+i*1024)
    kx=lambda d,t,u: rd(d,1,KX+(t*4+u)*1024)
    for i in range(5): kx(36+4*i,i&1,i>>1)
    e('s_add_u32 s51, s51, 20480')
    for i in range(5):
        lg(9-i)
        for T in range(4): smf(56+4*T,16+4*i,wreg((T,5+i)))
        if i==1: e(f's_mov_b32 m0, {DUM}\nv_and_b32 v11, 0xf0, v1\nv_lshlrev_b32 v11, 3, v11\ns_cmp_eq_u32 s58, 63\ns_cbranch_scc1 ch_nw\nbuffer_load_dword v11, s[4:7], s54 offen lds\nbuffer_load_dword v11, s[4:7], s55 offen lds\nch_nw:')
    def post(T):
        a=56+4*T; e(f'v_add_f32 v{a}, v{a}, v{a+1}\nv_add_f32 v{a+2}, v{a+2}, v{a+3}\nv_cvt_pk_bf16_f32 v{a}, v{a}, v{a+2}')
    vq=[(T,i) for i in (9,5,6,7,8) for T in (4,5)]
    def vr(n): T,i=vq[n]; smf(56+4*T,16+4*(i-5),wreg((T,i)))
    vr(0); vr(1); kx(32,1,2); vr(2); vr(3)
    for T in range(4):
        post(T); o=(T>>1)*2176+8*(T&1); e(f'ds_write_b16 v0, v{56+4*T} offset:{o}\nds_write_b16_d16_hi v0, v{56+4*T} offset:{o+272}'); vr(4+T)
    vr(8); vr(9); lg(0); e('s_barrier'); TS(3)
    for u in range(4): rd(16+4*u,2,64*u)
    kr=[(36,40),(44,48),(52,32),(36,40)]
    for u in range(4):
        lg([3,4,3,0][u]); F=16+4*u
        for t in range(3): mf(56+4*t,F if t==0 else kr[u][t-1],F,56+4*t if u else 0)
        if u==0: kx(36,0,3); kx(40,1,3)
    TS(4); post(4); post(5)
    e('s_cmp_lg_u32 s32, 0\ns_cbranch_scc1 ch_nk')
    for u in range(4): e(f'buffer_store_dwordx4 {R(16+4*u)}, v1, s[4:7], s56 offen offset:{u*1024} {KVF}')
    e(f'''ch_nk:
    s_cmp_eq_u32 s21, 0
    s_cbranch_scc1 ch_nv
    v_lshrrev_b32 v11, 2, v1
    buffer_store_dword v72, v11, s[4:7], s57 offen {KVF}
    buffer_store_dword v76, v11, s[4:7], s57 offen offset:256 {KVF}
    ch_nv:
    s_cmp_eq_u32 s58, 63
    s_cbranch_scc1 ch_fin''')
    e('v_mov_b32 v73, 0\nv_mov_b32 v77, 0\nv_max3_f32 v68, v56, v57, v60\nv_max3_f32 v69, v61, v62, v63\nv_max3_f32 v68, v68, v64, v65\nv_max3_f32 v69, v69, v66, v67\nv_max_f32 v68, v68, v69')
    z=iter(range(36,56))
    def zz(n):
        for _ in range(n): e(f'v_mov_b32 v{next(z)}, 0')
    for sw in (32,16):
        e('v_mov_b32 v69, v68'); zz(2); e(f'v_permlane{sw}_swap_b32 v69, v68'); zz(1); e('v_max_f32 v68, v68, v69')
    e('v_mul_f32 v68, s59, v68')
    sv=list(range(60,68))+[56,57]
    for x in sv: e(f'v_fma_f32 v{x}, v{x}, s59, -v68')
    for x in sv: e(f'v_exp_f32 v{x}, v{x}')
    for d in range(4): e(f'v_cvt_pk_bf16_f32 v{68+d}, v{60+2*d}, v{61+2*d}')
    e('v_cvt_pk_bf16_f32 v58, v56, v57\nv_mov_b32 v59, 0')
    mf(32,12,68,0); mf(60,80,68,0); mf(64,84,68,0)
    e('''v_mfma_f32_16x16x16_bf16 v[32:35], v[12:13], v[58:59], v[32:35]
    v_mfma_f32_16x16x16_bf16 v[60:63], v[72:73], v[58:59], v[60:63]
    v_mfma_f32_16x16x16_bf16 v[64:67], v[76:77], v[58:59], v[64:67]''')
    zz(6); e('v_rcp_f32 v32, v32'); zz(2)
    for x in range(60,68): e(f'v_mul_f32 v{x}, v{x}, v32')
    e('''v_cvt_pk_bf16_f32 v68, v60, v61
    v_cvt_pk_bf16_f32 v69, v64, v65
    v_cvt_pk_bf16_f32 v70, v62, v63
    v_cvt_pk_bf16_f32 v71, v66, v67
    ds_write2_b64 v3, v[68:69], v[70:71] offset0:0 offset1:2''')
    zz(6); lg(0); e('s_barrier'); TS(5); rd(60,1,OX); rd(64,1,OX+1024)
    vxpf(); lg(1)
    for t in range(5): smf(36+4*t,60,wreg(('o',2*t)))
    lg(0)
    for t in range(5): smf(36+4*t,64,wreg(('o',2*t+1)))
    kxpf()
    def fin(t,d):
        a=36+4*t; e(f'v_add_f32 v{a}, v{a}, v{a+1}\nv_add_f32 v{a+2}, v{a+2}, v{a+3}\nv_cvt_pk_bf16_f32 v{d}, v{a}, v{a+2}\nv_min_u32 v{d}, -2, v{d}')
    for t in range(4): fin(t,60+t)
    pst(60,6,0); fin(4,64); e('s_nop 1')
    for k in (1,2,3): e(f'v_mov_b32_dpp v{64+k}, v64 quad_perm:[{k},{k},{k},{k}] row_mask:0xf bank_mask:0xf')
    pst(64,7,1)
    e(f'''s_add_u32 s56, s56, 0x20000
    s_add_u32 s57, s57, 0x10000
    s_add_u32 s58, s58, 1
    s_branch ch_loop
    ch_fin:
    v_mov_b32 v16, 1
    v_bfe_u32 v17, v1, 2, 6
    s_lshl_b32 s23, s20, 1
    s_add_u32 s23, s23, s21
    s_lshl_b32 s23, s23, 2
    s_add_u32 s23, s23, s3
    s_lshl_b32 s23, s23, 6
    s_add_u32 s23, s23, {FA}
    s_waitcnt vmcnt(0)
    buffer_store_dword v16, v17, s[4:7], s23 offen sc1'''); stamp('s81','s_mov_b32 s81, 144\ns_cmp_eq_u32 s2, 9')
    if DBG:
        e('s_cmp_lg_u32 s2, 9\ns_cbranch_scc1 ch_x\ns_lshr_b32 s23, s3, 1\ns_lshl_b32 s23, s23, 6\ns_add_u32 s23, s23, 144\ns_add_u32 s24, s3, 1\ns_and_b32 s24, s24, 2\ns_cbranch_scc1 ch_x\nv_mov_b32 v17, 0')
        for i in range(8): e(f'v_mov_b32 v16, s{64+i}\nbuffer_store_dword v16, v17, s[72:75], s23 offen offset:{4*i}\ns_nop 1')
        e('ch_x:')
    e('ch_end:\ns_endpgm')
```

```python
XN=0; WQ=0x300000; WK=0x800000; WV=0xD00000; WG=0x1200000; WU=0x1480000; WOD=0x1700000
QF=0x2000000; KF=0x3000000; VF=0x4000000; OH=0x5000000; KM=0x6800000; VM=0x7000000
P2=0x7400000; P1=0x7540000; YB=0x9000000
FA=P1+63*0x50000; FB=FA+0x4000; FC=FB+0x10000
KT=182
L=[]
def e(s):
    for x in s.split('\n'):
        x=x.strip()
        if x: L.append(x if x.endswith(':') else '    '+x)
KERN=[]
def begin(name,grid,lds,nv,acc):
    KERN.append((name,grid,lds,nv,acc))
    L.append(f'.globl {name}\n.p2align 8\n.type {name},@function\n{name}:')
    e(f's_cmp_ge_u32 s2, {grid}\ns_cbranch_scc0 {name}_go\ns_endpgm\n{name}_go:')
def srd(d,off,size):
    e(f's_load_dwordx2 s[{d}:{d+1}], s[0:1], {off}\ns_mov_b32 s{d+2}, {size}\ns_mov_b32 s{d+3}, 0x00020000')
def lanes():
    srd(4,104,0x10000000)
    e('''v_lshrrev_b32 v1, 6, v0
    v_and_b32 v0, 63, v0
    v_readfirstlane_b32 s3, v1
    v_lshlrev_b32 v1, 4, v0
    v_lshrrev_b32 v2, 4, v0
    v_and_b32 v3, 15, v0''')
def xsum(a,t,op='v_add_f32'):
    e(f'''v_mov_b32 v{t}, v{a}
    s_nop 1
    v_permlane32_swap_b32 v{t}, v{a}
    s_nop 1
    {op} v{a}, v{a}, v{t}
    v_mov_b32 v{t}, v{a}
    s_nop 1
    v_permlane16_swap_b32 v{t}, v{a}
    s_nop 1
    {op} v{a}, v{a}, v{t}''')
def udiv(d,s,c,t):
    m=(1<<32)//c+1
    e(f's_mov_b32 s{t}, {m}\ns_mul_hi_u32 s{d}, s{s}, s{t}')
def finish(path):
    hdr=open('parallel_sum__memory_aug_recurrent_mem_tr__glu_gated_geglu__prompt.s.ref').read().split('; Override')[0]
    for n,g,l,nv,acc in KERN: hdr+=f'; @launch kernel={n} grid=({g},1,1) block=(256,1,1) lds={l}\n'
    hdr+='.amdgcn_target "amdgcn-amd-amdhsa--gfx950"\n.text\n'
    t='\n.section .rodata,"a"\n'
    for n,g,l,nv,acc in KERN:
        t+=f'''.p2align 6
.amdhsa_kernel {n}
  .amdhsa_next_free_vgpr {nv}
  .amdhsa_next_free_sgpr 96
  .amdhsa_accum_offset {acc}
  .amdhsa_group_segment_fixed_size 0
  .amdhsa_kernarg_size 112
  .amdhsa_user_sgpr_count 2
  .amdhsa_user_sgpr_kernarg_segment_ptr 1
  .amdhsa_system_sgpr_workgroup_id_x 1
.end_amdhsa_kernel
'''
    open(path,'w').write(hdr+'\n'.join(L)+t)

STAMP=[0]
def stamp(off,cond=''):
    if STAMP[0]:
        STAMP[0]+=1; t=f'st{STAMP[0]}'
        e(f'{cond}\ns_cbranch_scc0 {t}\ns_memrealtime s[78:79]\ns_waitcnt lgkmcnt(0)\nv_mov_b32 v16, s78\nv_lshlrev_b32 v17, 4, v1\nbuffer_store_dword v16, v17, s[72:75], {off} offen offset:36\n{t}:')
```

```python
from common import *
FL=['']
def dma(nd,slot,sb):
    o=[]
    for i in range(nd): o.append(f's_add_u32 m0, s38, {slot*sb+i*1024}\ns_nop 0\nbuffer_load_dwordx4 v4, s[4:7], s{40+i} offen {FL[0]} lds')
    return o
def gemm_pro(nt,nw,K):
    nd=(nt+nw)//2; sb=(nt+nw)*2048
    e(f's_mul_i32 s38, s3, {nd*1024}\nv_mov_b32 v4, v1\ns_lshr_b32 s36, s3, 1\ns_and_b32 s37, s3, 1')
    for s in range(4):
        for x in dma(nd,s,sb): e(x)
        e('v_add_u32 v4, 1024, v4')
    e(f's_mul_i32 s39, s36, {nt*1024}\nv_add_u32 v5, s39, v1\ns_mul_i32 s39, s37, {nw*1024}\ns_add_u32 s39, s39, {2*nt*1024}\nv_add_u32 v6, s39, v1')
    e(f'v_add_u32 v7, {2*sb}, v5\nv_add_u32 v8, {2*sb}, v6\ns_mov_b32 s35, {K}')
    for i in range(nt*nw*4): e(f'v_accvgpr_write_b32 a{i}, 0')
    e(f's_waitcnt vmcnt({3*nd})\ns_barrier')
    for x in reads(nt,nw,0,0): e(x)
def reads(nt,nw,slot,st):
    sb=(nt+nw)*2048; b=16+st*(nt+nw)*4; o=[]
    tr=[f'ds_read_b128 v[{b+4*i}:{b+4*i+3}], v{5+(slot&2)} offset:{(slot&1)*sb+i*1024}' for i in range(nt)]
    wr=[f'ds_read_b128 v[{b+4*nt+4*j}:{b+4*nt+4*j+3}], v{6+(slot&2)} offset:{(slot&1)*sb+j*1024}' for j in range(nw)]
    return tr+wr
def gemm_loop(tag,nt,nw,swap):
    nd=(nt+nw)//2; sb=(nt+nw)*2048
    e(f'{tag}_loop:')
    for u in range(4):
        e(f's_waitcnt vmcnt({2*nd}) lgkmcnt(0)\ns_barrier')
        fill=reads(nt,nw,(u+1)&3,(u+1)&1)+dma(nd,u,sb)+['v_add_u32 v4, 1024, v4']
        b=16+(u&1)*(nt+nw)*4; n=nt*nw; q=0
        for i in range(nt):
            for j in range(nw):
                T=f'v[{b+4*i}:{b+4*i+3}]'; W=f'v[{b+4*nt+4*j}:{b+4*nt+4*j+3}]'; c=(i*nw+j)*4
                A,B=(T,W) if swap else (W,T)
                e(f'v_mfma_f32_16x16x32_bf16 a[{c}:{c+3}], {A}, {B}, a[{c}:{c+3}]')
                m=i*nw+j+1
                while q<len(fill) and q*n<m*len(fill)*(1 if n<32 else 1.5): e(fill[q]); q+=1
        assert q==len(fill)
        if u&1: e(f's_sub_u32 s35, s35, 2\ns_cmp_eq_u32 s35, 0\n'+(f's_cbranch_scc1 {tag}_end' if u==1 else f's_cbranch_scc0 {tag}_loop'))
    e(f'{tag}_end:\ns_waitcnt vmcnt(0) lgkmcnt(0)\ns_barrier\ns_nop 7')
def rdacc(v,a):
    for r in range(4): e(f'v_accvgpr_read_b32 v{v+r}, a{a+r}')
def frag_store(a0,a1,n,sreg,off,fl='sc1'):
    b=16+(n&3)*12
    rdacc(b,a0); rdacc(b+4,a1)
    for d in range(4): e(f'v_cvt_pk_bf16_f32 v{b+8+d}, v{b+2*d}, v{b+2*d+1}')
    e(f'buffer_store_dwordx4 v[{b+8}:{b+11}], v1, s[4:7], s{sreg} offen offset:{off} {fl}')
def epi_qk():
    for i in range(8):
        for u in range(4): frag_store((i*8+2*u)*4,(i*8+2*u+1)*4,u,30,u*1024)
        e('s_add_u32 s30, s30, 0x20000')
def epi_v():
    for sg in range(4):
        for j in range(8):
            frag_store((2*sg*8+j)*4,((2*sg+1)*8+j)*4,j,30,(j&3)*1024)
            if j&3==3: e(f's_add_u32 s30, s30, {4096 if j==3 else 0x40000-4096}')
def set_frags(tb,w0,w1,half):
    e(f's_mul_i32 s40, s3, {8*20480}\ns_add_u32 s40, s40, s{tb}\ns_cmp_eq_u32 s3, 2\ns_cselect_b32 s40, s{w0}, s40\ns_cmp_eq_u32 s3, 3\ns_cselect_b32 s40, s{w1}, s40')
    e(f's_mov_b32 s39, {4*20480}\ns_cmp_ge_u32 s3, 2\ns_cselect_b32 s39, {half}, s39\ns_add_u32 s44, s40, s39')
    for i in (1,2,3): e(f's_add_u32 s{40+i}, s40, {i*20480}\ns_add_u32 s{44+i}, s44, {i*20480}')
def kv():
    e('wk_kv:\nv_mov_b32 v9, 1')
    e(f'''s_mul_i32 s20, s19, 10923
    s_lshr_b32 s20, s20, 16
    s_mul_i32 s21, s20, 6
    s_sub_u32 s21, s19, s21
    s_bfe_u32 s22, s19, 0x50001
    s_and_b32 s23, s19, 1
    s_add_u32 s23, s23, 6
    s_cmp_ge_u32 s19, 192
    s_cselect_b32 s20, s22, s20
    s_cselect_b32 s21, s23, s21
    s_mul_i32 s22, s21, {16*20480}
    s_mul_i32 s23, s20, {8*20480}
    s_add_u32 s24, s23, {WV}
    s_add_u32 s23, s23, {WK}''')
    set_frags(22,23,24,4*20480)
    e('s_waitcnt lgkmcnt(0)')
    gemm_pro(8,8,20)
    e('s_lshl_b32 s30, s21, 21\ns_lshl_b32 s31, s36, 20\ns_add_u32 s30, s30, s31\ns_cmp_eq_u32 s37, 1\ns_cbranch_scc1 kv_v')
    gemm_loop('kv_k',8,8,0)
    e(f's_lshl_b32 s31, s20, 12\ns_add_u32 s30, s30, s31\ns_add_u32 s30, s30, {KF}')
    epi_qk(); e('s_branch wk_cnt\nkv_v:')
    gemm_loop('kv_vv',8,8,1)
    e(f's_lshl_b32 s31, s20, 13\ns_add_u32 s30, s30, s31\ns_add_u32 s30, s30, {VF}')
    epi_v(); e('s_branch wk_cnt')
def workers():
    e(f'''wk_next:
    s_cmp_ge_u32 s19, 496
    s_cbranch_scc1 wk_p2
    s_cmp_lt_u32 s19, 256
    s_cbranch_scc1 wk_kv
    s_and_b32 s21, s19, 7
    s_bfe_u32 s20, s19, 0x50003
    s_mul_i32 s22, s21, {16*20480}
    s_cmp_ge_u32 s19, 384
    s_cbranch_scc1 wk_gu
    s_mul_i32 s23, s20, {16*20480}
    s_add_u32 s23, s23, {WQ}
    s_add_u32 s24, s23, {8*20480}''')
    set_frags(22,23,24,4*20480)
    e(f'''s_branch wk_run
    wk_gu:
    s_sub_u32 s20, s20, 16
    s_mul_i32 s23, s20, {8*20480}
    s_add_u32 s23, s23, {WG}
    s_add_u32 s24, s23, {4*20480}''')
    set_frags(22,23,24,WU-WG)
    e('wk_run:')
    gemm_pro(8,8,20); gemm_loop('wk',8,8,0)
    e(f'''s_lshl_b32 s20, s20, 1
    s_add_u32 s20, s20, s37
    s_cmp_ge_u32 s19, 384
    s_cbranch_scc1 wk_egu
    s_lshl_b32 s30, s21, 21
    s_lshl_b32 s31, s36, 20
    s_add_u32 s30, s30, s31
    s_lshl_b32 s31, s20, 12
    s_add_u32 s30, s30, s31
    s_add_u32 s30, s30, {QF}''')
    epi_qk()
    e(f'''s_branch wk_done
    wk_egu:
    s_cmp_ge_u32 s20, 27
    s_cbranch_scc1 wk_done
    s_lshl_b32 s30, s21, 1
    s_add_u32 s30, s30, s36
    s_mul_i32 s30, s30, {8*KT*1024}
    s_lshl_b32 s31, s20, 11
    s_add_u32 s30, s30, s31
    s_add_u32 s30, s30, {OH+128*1024}
    s_mov_b32 s28, 0xc0135761
    v_mov_b32 v9, 0xbdd2d3e8''')
    for i in range(8):
        for u in range(2):
            b=16+u*32
            for x in range(2): rdacc(b+4*x,(i*8+2*u+x)*4); rdacc(b+8+4*x,(i*8+4+2*u+x)*4)
            for r in range(8): e(f'v_mul_f32 v{b+16+r}, v{b+r}, v{b+r}')
            for r in range(8): e(f'v_fma_f32 v{b+16+r}, v{b+16+r}, v9, s28')
            for r in range(8): e(f'v_mul_f32 v{b+16+r}, v{b+16+r}, v{b+r}')
            for r in range(8): e(f'v_exp_f32 v{b+16+r}, v{b+16+r}')
            for r in range(8): e(f'v_add_f32 v{b+16+r}, 1.0, v{b+16+r}')
            for r in range(8): e(f'v_rcp_f32 v{b+16+r}, v{b+16+r}')
            for r in range(8): e(f'v_mul_f32 v{b+r}, v{b+r}, v{b+16+r}')
            for r in range(8): e(f'v_mul_f32 v{b+r}, v{b+r}, v{b+8+r}')
            for d in range(4): e(f'v_cvt_pk_bf16_f32 v{b+24+d}, v{b+2*d}, v{b+2*d+1}')
            e(f'buffer_store_dwordx4 v[{b+24}:{b+27}], v1, s[4:7], s30 offen offset:{u*1024} sc1')
        e(f's_add_u32 s30, s30, {KT*1024}')
    e(f'''wk_done:
    v_mov_b32 v9, 0x10000
    s_branch wk_at
    wk_cnt:
    s_lshl_b32 s22, s20, 11
    s_lshl_b32 s23, s21, 8
    s_add_u32 s22, s22, s23
    s_lshl_b32 s23, s3, 6
    s_add_u32 s22, s22, s23
    s_add_u32 s22, s22, {FB}
    v_lshlrev_b32 v10, 2, v3
    s_waitcnt vmcnt(0)
    buffer_store_dword v9, v10, s[4:7], s22 offen sc1
    wk_at:
    s_add_u32 s19, s19, 192
    s_lshl_b32 s21, s21, 2
    v_lshlrev_b32 v10, 8, v0
    s_waitcnt vmcnt(0)
    s_barrier
    s_cmp_lg_u32 s3, 0
    s_cbranch_scc1 wk_na
    buffer_atomic_add v9, v10, s[72:75], s21 offen sc1
    wk_na:
    s_cmp_ge_u32 s19, 382
    s_cbranch_scc1 wk_next
    s_lshl_b32 s21, s17, 2
    s_add_u32 s21, s21, s3
    s_lshl_b32 s21, s21, 14
    s_add_u32 s21, s21, {P1+25*0x50000}''')
    for i in range(4): e(f'v_mov_b32 v{12+i}, -1')
    for i in range(16):
        e(f'buffer_store_dwordx4 v[12:15], v1, s[4:7], s21 offen offset:{(i&3)*1024} sc1')
        if i&3==3: e('s_add_u32 s21, s21, 4096')
    e('s_waitcnt vmcnt(0)\ns_branch wk_next')
    kv()
def mm(W,T):
    for i in range(2):
        for j in range(4): c=(i*4+j)*4; e(f'v_mfma_f32_16x16x32_bf16 a[{c}:{c+3}], {W[0]}[{W[1]+4*j}:{W[1]+4*j+3}], v[{T+4*i}:{T+4*i+3}], a[{c}:{c+3}]')
def ldf(p,d,n,s0,av,off,fl=''):
    for j in range(n): e(f'buffer_load_dwordx4 {p}[{d+4*j}:{d+4*j+3}], v{av}, s[4:7], s{s0+j} offen offset:{off} {fl}')
def fin_a():
    e(f's_mul_i32 s50, s18, {2*KT*1024}\ns_add_u32 s50, s50, {OH}\ns_add_u32 s51, s50, {KT*1024}\ns_mul_i32 s52, s16, {4*KT*1024}\ns_add_u32 s52, s52, {WOD}')
    for j in (1,2,3): e(f's_add_u32 s{52+j}, s52, {j*KT*1024}')
    e('s_lshl_b32 s20, s3, 10\ns_add_u32 s20, s20, 0x20000\nv_add_u32 v12, s20, v1\ns_lshl_b32 s20, s3, 15\nv_add_u32 v13, s20, v1\ns_mul_i32 s56, s3, 40960\nv_add_u32 v15, s56, v1\ns_cmp_ge_u32 s3, 2\ns_cselect_b32 s20, 0x70000000, 0')
    for i in range(32): e(f'v_accvgpr_write_b32 a{i}, 0')
    for b in range(2):
        for k in range(7):
            if b==1 and k==6: e('v_add_u32 v12, s20, v12')
            ldf('v',16+24*k,2,50,12,0); ldf('v',24+24*k,4,52,12,0); e('v_add_u32 v12, 4096, v12')
        for k in range(7): e(f's_waitcnt vmcnt({36-6*k})'); mm(('v',24+24*k),16+24*k)
    stamp('s81','s_mov_b32 s81, 204\ns_cmp_eq_u32 s17, 126'); e('v_add_u32 v14, 8192, v13')
    for k in range(8,32):
        if k<22: ldf('a',32+16*(k-8),4,52,14,(k&3)*1024)
        else:
            for j in range(4): e(f's_add_u32 m0, s56, {(k-22)*4096+j*1024-(k&3)*1024}\ns_nop 0\nbuffer_load_dwordx4 v14, s[4:7], s{52+j} offen offset:{(k&3)*1024} lds' if (k-22)*4096+j*1024>=(k&3)*1024 else
                f's_add_u32 m0, s56, {(k-22)*4096+j*1024}\ns_add_u32 s20, s{52+j}, {(k&3)*1024}\nbuffer_load_dwordx4 v14, s[4:7], s20 offen lds')
        if k&3==3: e('v_add_u32 v14, 4096, v14\ns_waitcnt vmcnt(40)')
def fin_b():
    e('v_add_u32 v14, 4096, v13')
    for k in range(8): ldf('v',128+16*k,4,52,13+(k>>2),(k&3)*1024)
def fin_c():
    e(f'''s_lshl_b32 s30, s18, 1
    s_add_u32 s30, s30, s3
    s_mul_i32 s30, s30, {16*1280}
    s_lshl_b32 s31, s16, 7
    s_add_u32 s30, s30, s31
    s_mov_b32 s22, 0xffff0000
    v_mov_b32 v14, v13''')
    free=[16+8*i for i in range(10)]; at={}; n=[0]
    def iss():
        while free and n[0]<32:
            k=n[0]; at[k]=free.pop(0); ldf('v',at[k],2,50,14,(k&3)*1024); n[0]+=1
            if k&3==3: e('v_add_u32 v14, 4096, v14')
    def rw(k):
        for j in range(4): b=96+16*(k&1)+4*j; e(f'ds_read_b128 v[{b}:{b+3}], v15 offset:{(k-22)*4096+j*1024}')
    iss(); rw(22); rw(23)
    for k in range(32):
        e(f's_waitcnt vmcnt({2*(n[0]-k-1)})'+(f' lgkmcnt({4 if k<31 else 0})' if k>=22 else ''))
        mm(('v',128+16*k) if k<8 else ('a',32+16*(k-8)) if k<22 else ('v',96+16*(k&1)),at[k])
        if k<8: free.extend([at[k],128+16*k,136+16*k]); iss()
        if 22<=k<30: rw(k+2)
    e('v_mul_u32_u24 v4, 1280, v3\nv_lshl_add_u32 v4, v2, 5, v4\ns_lshl_b32 s20, s3, 12\nv_add_u32 v5, s20, v1\nv_add_u32 v6, 81920, v5\ns_cmp_ge_u32 s3, 2\ns_cbranch_scc1 p2_w')
    for x in range(2): e(f'buffer_load_dwordx4 v[{16+4*x}:{19+4*x}], v4, s[8:11], s30 offen offset:{16*x}')
    e('p2_w:\ns_nop 7')
    for t in range(8): e(f'ds_write_b128 v15, a[{4*t}:{4*t+3}] offset:{t*1024}')
    e('s_waitcnt lgkmcnt(0)\ns_barrier\ns_cbranch_scc1 p2_done')
    for p in range(4):
        for j in range(4): b=32+16*p+4*j; e(f'ds_read_b128 v[{b}:{b+3}], v{5+(p>>1)} offset:{(p&1)*40960+j*1024}')
    for p in range(1,4):
        e(f's_waitcnt lgkmcnt({12-4*p})')
        for r in range(16): e(f'v_add_f32 v{32+r}, v{32+r}, v{32+16*p+r}')
    e('s_waitcnt vmcnt(0)')
    for d in range(8):
        cb=d>>2; th=(d>>1)&1; hf=d&1; r=2*hf+cb; x=16+d
        e(f'v_lshlrev_b32 v5, 16, v{x}\nv_and_b32 v6, s22, v{x}\nv_add_f32 v5, v5, v{32+8*th+r}\nv_add_f32 v6, v6, v{36+8*th+r}\nv_cvt_pk_bf16_f32 v{x}, v5, v6')
    for x in range(2): e(f'buffer_store_dwordx4 v[{16+4*x}:{19+4*x}], v4, s[12:15], s30 offen offset:{16*x}')
    e('s_waitcnt vmcnt(0)')
def poll(tag,ld,cmp,sl):
    e(f's_cmp_lg_u32 s3, 0\ns_cbranch_scc1 {tag}_ok\n{tag}:\n{ld}\ns_waitcnt vmcnt(0)\n{cmp}\ns_cbranch_vccz {tag}_ok\ns_sleep {sl}\ns_sub_u32 s34, s34, 1\ns_cbranch_scc0 {tag}\ns_endpgm\n{tag}_ok:')
def phase2(attn,sl):
    e(f'''wk_p2:
    s_bfe_u32 s18, s17, 0x40001
    s_lshr_b32 s16, s17, 5
    s_lshl_b32 s16, s16, 1
    s_and_b32 s20, s17, 1
    s_add_u32 s16, s16, s20
    s_sub_u32 s16, 11, s16
    s_cmp_ge_u32 s16, 10
    s_cbranch_scc1 p2_end
    s_mov_b32 s34, 200000
    p2_next:
    s_lshr_b32 s20, s18, 3
    s_lshl_b32 s20, s20, 2
    v_mov_b32 v4, 0
    v_and_b32 v5, 1, v0
    v_mul_u32_u24 v5, 5120, v5
    s_mul_i32 s21, s18, 20480
    s_add_u32 s21, s21, {P2+2*20480+10240}
    s_mov_b32 s22, {32+(30<<16)}''')
    stamp('s80','s_cmp_eq_u32 s17, 126'); e('s_add_u32 s80, s80, 4')
    poll('p2_a','buffer_load_dword v6, v4, s[72:75], s20 offen sc1','v_cmp_ne_u32 vcc, s22, v6',sl)
    e('s_barrier'); stamp('s81','s_mov_b32 s81, 148\ns_cmp_eq_u32 s17, 126'); fin_a()
    e('s_mov_b32 s57, s21\ns_cmp_ge_u32 s16, 8\ns_cbranch_scc1 p2_na\ns_waitcnt vmcnt(24)'); attn(0)
    e(f'''v_and_b32 v8, 1, v0
    v_mul_u32_u24 v8, 5120, v8
    s_cmp_lt_u32 s18, 62
    s_cbranch_scc1 p2_b0
    v_and_b32 v8, 31, v0
    v_lshlrev_b32 v8, 6, v8
    s_lshl_b32 s57, s16, 11
    s_add_u32 s57, s57, {FA}
    p2_b0:''')
    poll('p2_b','buffer_load_dword v9, v8, s[4:7], s57 offen sc1','v_cmp_eq_u32 vcc, -1, v9',sl)
    e('s_barrier'); stamp('s81','s_mov_b32 s81, 152\ns_cmp_eq_u32 s17, 999'); attn(1)
    e(f'''s_lshl_b32 s20, s20, 6
    s_add_u32 s20, s20, {FC}
    v_lshlrev_b32 v10, 2, v3
    s_waitcnt vmcnt(0)
    buffer_store_dword v3, v10, s[4:7], s20 offen sc1
    p2_na:
    s_lshl_b32 s20, s18, 11
    s_add_u32 s20, s20, {FC}
    v_and_b32 v4, 31, v0
    v_lshlrev_b32 v4, 6, v4
    s_waitcnt vmcnt(24)''')
    stamp(24,'s_cmp_eq_u32 s17, 126'); fin_b()
    poll('p2_d','buffer_load_dword v6, v4, s[4:7], s20 offen sc1','v_cmp_eq_u32 vcc, -1, v6',sl)
    e('s_waitcnt vmcnt(0)\ns_barrier'); stamp('s81','s_mov_b32 s81, 208\ns_cmp_eq_u32 s17, 126'); fin_c()
    stamp(20,'s_cmp_eq_u32 s17, 126')
    e('p2_done:\ns_add_u32 s18, s18, 16\ns_cmp_lt_u32 s18, 64\ns_cbranch_scc1 p2_next\np2_end:\ns_endpgm')
```

```python
from common import *
def pack(tag,karg,size,stride,ncg,cg0,dord,cmap,dst,tstride,ks0):
    e(f'{tag}:')
    srd(8,karg,size)
    udiv(21,20,ncg,23)
    e(f's_mul_i32 s22, s21, {ncg}\ns_sub_u32 s22, s20, s22\ns_mul_i32 s24, s21, {32*stride}\ns_lshl_b32 s25, s22, 7\ns_add_u32 s24, s24, s25\ns_add_u32 s24, s24, {cg0*128}')
    e(f'v_mul_u32_u24 v4, {(4 if dord else 8)*stride}, v2\nv_lshl_add_u32 v4, v3, 3, v4\ns_waitcnt lgkmcnt(0)')
    for t in range(8):
        r=(16*(t>>2)+(t&3)) if dord else t
        e(f's_add_u32 s25, s24, {r*stride}\nbuffer_load_dwordx2 v[{16+2*t}:{17+2*t}], v4, s[8:11], s25 offen')
    e(f's_mov_b32 s26, {tstride}\ns_mul_i32 s27, s22, {4*tstride}\ns_lshl_b32 s28, s21, 10\ns_add_u32 s27, s27, s28\ns_add_u32 s27, s27, {dst+ks0*1024}')
    e('v_lshlrev_b32 v5, 8, v2\nv_lshrrev_b32 v6, 2, v3\nv_and_b32 v7, 3, v3')
    if cmap==0:
        e('v_mul_lo_u32 v6, v6, s26\nv_lshl_add_u32 v5, v7, 6, v5\nv_add_u32 v5, v5, v6'); offs=[(0,16*c) for c in range(4)]
    elif cmap==1:
        e('v_lshl_add_u32 v5, v6, 6, v5\nv_lshrrev_b32 v6, 1, v7\nv_lshl_add_u32 v5, v6, 4, v5\nv_and_b32 v7, 1, v7\nv_lshlrev_b32 v7, 1, v7\nv_mul_lo_u32 v7, v7, s26\nv_add_u32 v5, v5, v7')
        offs=[((c&1),32*(c>>1)) for c in range(4)]
    else:
        e('v_mul_lo_u32 v6, v6, s26\nv_lshl_add_u32 v5, v7, 5, v5\nv_add_u32 v5, v5, v6'); offs=[(0,128*(c>>1)+16*(c&1)) for c in range(4)]
    e(f's_add_u32 s28, s27, s26\ns_mov_b32 s30, 0x05040100\ns_mov_b32 s31, 0x07060302\ns_waitcnt vmcnt(0)')
    for c in range(4):
        for d in range(4): e(f'v_perm_b32 v{32+4*c+d}, v{16+2*(2*d+1)+(c>>1)}, v{16+4*d+(c>>1)}, s{30+(c&1)}')
        e(f'buffer_store_dwordx4 v[{32+4*c}:{35+4*c}], v5, s[4:7], s{27+offs[c][0]} offen offset:{offs[c][1]}')
    e('s_endpgm')
def prep():
    T20=20*1024; TK=KT*1024
    jobs=[('pk_k',24,5242880,8192,64,0,0,0,WK,T20,0,1280),('pk_v',32,5242880,8192,64,0,0,0,WV,T20,0,1280),
          ('pk_q',16,5242880,8192,64,0,0,0,WQ,T20,0,1280),('pk_o',40,5242880,1280,10,0,1,1,WOD,TK,0,1280),
          ('pk_s',40,5242880,1280,2,8,1,2,WOD+40*TK,TK,0,256),('pk_g',64,2211840,3456,27,0,0,0,WG,T20,0,540),
          ('pk_u',72,2211840,3456,27,0,0,0,WU,T20,0,540),('pk_d',80,2211840,1280,10,0,1,1,WOD,TK,128,540)]
    roles=[('pr_ln',128),('pr_m0',4)]+[(j[0],j[-1]) for j in jobs]+[('pr_fill',592)]
    tot=sum(r[1] for r in roles); assert tot%4==0
    begin('prep_kernel',tot//4,0,104,104)
    lanes()
    e('s_lshl_b32 s20, s2, 2\ns_add_u32 s20, s20, s3')
    for n,c in roles: e(f's_cmp_lt_u32 s20, {c}\ns_cbranch_scc1 {n}\ns_sub_u32 s20, s20, {c}')
    e('s_endpgm')
    for j in jobs: pack(*j[:-1])
    e(f'pr_fill:\ns_lshl_b32 s21, s20, 14\ns_mov_b32 s22, {P2+20480}\ns_cmp_ge_u32 s20, 579\ns_cselect_b32 s22, {FA-579*16384}, s22\ns_add_u32 s21, s21, s22\nv_mov_b32 v4, -1\nv_mov_b32 v5, -1\nv_mov_b32 v6, -1\nv_mov_b32 v7, -1\ns_waitcnt lgkmcnt(0)')
    for i in range(16):
        e(f'buffer_store_dwordx4 v[4:7], v1, s[4:7], s21 offen offset:{(i&3)*1024}')
        if i&3==3: e('s_add_u32 s21, s21, 4096')
    e('s_endpgm\npr_m0:\ns_cmp_eq_u32 s20, 0\ns_cbranch_scc1 pr_m1\ns_endpgm\npr_m1:')
    srd(8,8,10240)
    e('v_lshrrev_b32 v4, 1, v3\nv_mul_u32_u24 v4, 1280, v4\nv_lshl_add_u32 v4, v2, 5, v4\nv_and_b32 v5, 1, v3\nv_lshl_add_u32 v4, v5, 2, v4\ns_waitcnt lgkmcnt(0)')
    for kc in range(10):
        for d in range(4): e(f'buffer_load_dword v{16+4*kc+d}, v4, s[8:11], 0 offen offset:{128*kc+8*d}')
    e('s_waitcnt vmcnt(0)')
    for i in range(40): e(f'v_min_u32 v{16+i}, -2, v{16+i}')
    for kc in range(10):
      for cp in range(2): e(f's_mov_b32 s21, {P2+cp*10240+((kc>>2)*5+(kc&3) if kc<8 else (kc-8)*5+4)*1024}\nbuffer_store_dwordx4 v[{16+4*kc}:{19+4*kc}], v1, s[4:7], s21 offen')
    e('s_endpgm\npr_ln:')
    srd(8,0,2621440)
    e('v_mul_u32_u24 v4, 1280, v3\nv_lshl_add_u32 v4, v2, 4, v4\ns_mul_i32 s21, s20, 20480\ns_mov_b32 s22, 0xffff0000\ns_waitcnt lgkmcnt(0)')
    for k in range(20): e(f'buffer_load_dwordx4 v[{16+4*k}:{19+4*k}], v4, s[8:11], s21 offen offset:{64*k}')
    e('v_mov_b32 v8, 0\nv_mov_b32 v9, 0\ns_waitcnt vmcnt(0)')
    for i in range(80): e(f'v_lshlrev_b32 v5, 16, v{16+i}\nv_and_b32 v6, s22, v{16+i}\nv_add_f32 v8, v8, v5\nv_add_f32 v9, v9, v6')
    e('v_add_f32 v8, v8, v9'); xsum(8,9)
    e('v_mul_f32 v8, 0x3acccccd, v8\nv_mov_b32 v10, 0\nv_mov_b32 v11, 0')
    for i in range(80): e(f'v_lshlrev_b32 v5, 16, v{16+i}\nv_and_b32 v6, s22, v{16+i}\nv_sub_f32 v5, v5, v8\nv_sub_f32 v6, v6, v8\nv_fmac_f32 v10, v5, v5\nv_fmac_f32 v11, v6, v6')
    e('v_add_f32 v10, v10, v11'); xsum(10,9)
    e('''v_mul_f32 v10, 0x3acccccd, v10
    v_cvt_pk_bf16_f32 v8, v8, v10
    v_and_b32 v10, s22, v8
    v_lshlrev_b32 v8, 16, v8
    v_add_f32 v10, 0x3727c5ac, v10
    v_cvt_pk_bf16_f32 v10, v10, v10
    v_and_b32 v10, s22, v10
    v_sqrt_f32 v10, v10
    s_nop 0
    v_cvt_pk_bf16_f32 v10, v10, v10
    v_and_b32 v10, s22, v10
    v_rcp_f32 v10, v10
    s_nop 0''')
    for i in range(80):
        e(f'''v_lshlrev_b32 v5, 16, v{16+i}
        v_and_b32 v6, s22, v{16+i}
        v_sub_f32 v5, v5, v8
        v_sub_f32 v6, v6, v8
        v_cvt_pk_bf16_f32 v6, v5, v6
        v_lshlrev_b32 v5, 16, v6
        v_and_b32 v6, s22, v6
        v_mul_f32 v5, v5, v10
        v_mul_f32 v6, v6, v10
        v_cvt_pk_bf16_f32 v{16+i}, v5, v6''')
        if i&3==3:
            k=i>>2
            e(f'buffer_store_dwordx4 v[{16+4*k}:{19+4*k}], v1, s[4:7], s21 offen offset:{(k&3)*1024}')
            if k&3==3: e('s_add_u32 s21, s21, 4096')
    e('s_endpgm')
```

```python
import sys
from common import *
import prep,gemm,chain,attn
for a in sys.argv[2:]:
    k,v=a.split('='); setattr(chain,k,int(v))
STAMP[0]=chain.ST; prep.prep()
begin('main_kernel',256,163840,512,256); lanes(); srd(72,96,256)
e('s_cmp_ge_u32 s2, 64\ns_cbranch_scc0 ch_entry\ns_sub_u32 s19, s2, 64\ns_waitcnt lgkmcnt(0)' if not chain.PL else 's_and_b32 s19, s2, 7\ns_cmp_ge_u32 s19, 2\ns_cbranch_scc0 ch_entry\ns_lshr_b32 s20, s2, 3\ns_sub_u32 s19, s19, 2\ns_lshl_b32 s19, s19, 5\ns_add_u32 s19, s19, s20\ns_waitcnt lgkmcnt(0)')
srd(8,0,2621440); srd(12,88,2621440); e('s_mov_b32 s17, s19\ns_waitcnt lgkmcnt(0)')
stamp(0,'s_mov_b32 s80, 4\ns_cmp_eq_u32 s17, 126'); gemm.workers(); gemm.phase2(attn.attn,chain.SLW)
e('ch_entry:'); chain.chain()
finish(sys.argv[1] if len(sys.argv)>1 else 'parallel_sum__memory_aug_recurrent_mem_tr__glu_gated_geglu__prompt.s')
```

```python
from common import *
def pack(tag,karg,size,stride,ncg,cg0,dord,cmap,dst,tstride,ks0):
    e(f'{tag}:')
    srd(8,karg,size)
    udiv(21,20,ncg,23)
    e(f's_mul_i32 s22, s21, {ncg}\ns_sub_u32 s22, s20, s22\ns_mul_i32 s24, s21, {32*stride}\ns_lshl_b32 s25, s22, 7\ns_add_u32 s24, s24, s25\ns_add_u32 s24, s24, {cg0*128}')
    e(f'v_mul_u32_u24 v4, {(4 if dord else 8)*stride}, v2\nv_lshl_add_u32 v4, v3, 3, v4\ns_waitcnt lgkmcnt(0)')
    for t in range(8):
        r=(16*(t>>2)+(t&3)) if dord else t
        e(f's_add_u32 s25, s24, {r*stride}\nbuffer_load_dwordx2 v[{16+2*t}:{17+2*t}], v4, s[8:11], s25 offen')
    e(f's_mov_b32 s26, 1024\ns_lshl_b32 s29, s3, 12\ns_mul_i32 s27, s22, {4*tstride}\ns_lshl_b32 s28, s21, 10\ns_add_u32 s27, s27, s28\ns_add_u32 s27, s27, {dst+ks0*1024}')
    e('v_lshlrev_b32 v5, 8, v2\nv_lshrrev_b32 v6, 2, v3\nv_and_b32 v7, 3, v3')
    if cmap==0:
        e('v_mul_lo_u32 v6, v6, s26\nv_lshl_add_u32 v5, v7, 6, v5\nv_add_u32 v5, v5, v6'); offs=[(0,16*c) for c in range(4)]
    elif cmap==1:
        e('v_lshl_add_u32 v5, v6, 6, v5\nv_lshrrev_b32 v6, 1, v7\nv_lshl_add_u32 v5, v6, 4, v5\nv_and_b32 v7, 1, v7\nv_lshlrev_b32 v7, 1, v7\nv_mul_lo_u32 v7, v7, s26\nv_add_u32 v5, v5, v7')
        offs=[((c&1),32*(c>>1)) for c in range(4)]
    else:
        e('v_mul_lo_u32 v6, v6, s26\nv_lshl_add_u32 v5, v7, 5, v5\nv_add_u32 v5, v5, v6'); offs=[(0,128*(c>>1)+16*(c&1)) for c in range(4)]
    e(f'v_add_u32 v5, s29, v5\nv_add_u32 v6, s29, v1\ns_mov_b32 s30, 0x05040100\ns_mov_b32 s31, 0x07060302\ns_waitcnt vmcnt(0)')
    for c in range(4):
        for d in range(4): e(f'v_perm_b32 v{32+4*c+d}, v{16+2*(2*d+1)+(c>>1)}, v{16+4*d+(c>>1)}, s{30+(c&1)}')
        e(f'ds_write_b128 v5, v[{32+4*c}:{35+4*c}] offset:{offs[c][0]*1024+offs[c][1]}')
    for c in range(4): e(f'ds_read_b128 v[{48+4*c}:{51+4*c}], v6 offset:{c*1024}')
    for c in range(4): e(f's_waitcnt lgkmcnt({3-c})\nbuffer_store_dwordx4 v[{48+4*c}:{51+4*c}], v1, s[4:7], s27 offen\ns_add_u32 s27, s27, {tstride}')
    e('s_endpgm')
def prep():
    T20=20*1024; TK=KT*1024
    jobs=[('pk_k',24,5242880,8192,64,0,0,0,WK,T20,0,1280),('pk_v',32,5242880,8192,64,0,0,0,WV,T20,0,1280),
          ('pk_q',16,5242880,8192,64,0,0,0,WQ,T20,0,1280),('pk_o',40,5242880,1280,10,0,1,1,WOD,TK,0,1280),
          ('pk_s',40,5242880,1280,2,8,1,2,WOD+40*TK,TK,0,256),('pk_g',64,2211840,3456,27,0,0,0,WG,T20,0,540),
          ('pk_u',72,2211840,3456,27,0,0,0,WU,T20,0,540),('pk_d',80,2211840,1280,10,0,1,1,WOD,TK,128,540)]
    roles=[('pr_ln',512),('pr_m0',4)]+[(j[0],j[-1]) for j in jobs]+[('pr_fill',592)]
    tot=sum(r[1] for r in roles); assert tot%4==0
    begin('prep_kernel',tot//4,16384,64,64)
    lanes()
    e('s_lshl_b32 s20, s2, 2\ns_add_u32 s20, s20, s3')
    for n,c in roles: e(f's_cmp_lt_u32 s20, {c}\ns_cbranch_scc1 {n}\ns_sub_u32 s20, s20, {c}')
    e('s_endpgm')
    for j in jobs: pack(*j[:-1])
    e(f'pr_fill:\ns_lshl_b32 s21, s20, 14\ns_mov_b32 s22, {P2+20480}\ns_cmp_ge_u32 s20, 579\ns_cselect_b32 s22, {FA-579*16384}, s22\ns_add_u32 s21, s21, s22\nv_mov_b32 v4, -1\nv_mov_b32 v5, -1\nv_mov_b32 v6, -1\nv_mov_b32 v7, -1\ns_waitcnt lgkmcnt(0)')
    for i in range(16):
        e(f'buffer_store_dwordx4 v[4:7], v1, s[4:7], s21 offen offset:{(i&3)*1024}')
        if i&3==3: e('s_add_u32 s21, s21, 4096')
    e('s_endpgm\npr_m0:\ns_cmp_eq_u32 s20, 0\ns_cbranch_scc1 pr_m1\ns_endpgm\npr_m1:')
    srd(8,8,10240)
    e('v_lshrrev_b32 v4, 1, v3\nv_mul_u32_u24 v4, 1280, v4\nv_lshl_add_u32 v4, v2, 5, v4\nv_and_b32 v5, 1, v3\nv_lshl_add_u32 v4, v5, 2, v4\ns_waitcnt lgkmcnt(0)')
    for kc in range(10):
        for d in range(4): e(f'buffer_load_dword v{16+4*kc+d}, v4, s[8:11], 0 offen offset:{128*kc+8*d}')
    e('s_waitcnt vmcnt(0)')
    for i in range(40): e(f'v_min_u32 v{16+i}, -2, v{16+i}')
    for kc in range(10):
      for cp in range(2): e(f's_mov_b32 s21, {P2+cp*10240+((kc>>2)*5+(kc&3) if kc<8 else (kc-8)*5+4)*1024}\nbuffer_store_dwordx4 v[{16+4*kc}:{19+4*kc}], v1, s[4:7], s21 offen')
    e('s_endpgm\npr_ln:')
    srd(8,0,2621440)
    e('v_mul_u32_u24 v4, 1280, v3\nv_lshl_add_u32 v4, v2, 4, v4\ns_lshr_b32 s23, s20, 2\ns_mul_i32 s23, s23, 20480\ns_mul_i32 s21, s3, 320\ns_add_u32 s23, s23, s21\ns_mul_i32 s21, s20, 5120\ns_lshl_b32 s24, s3, 2\nv_add_u32 v7, s24, v1\ns_mov_b32 s22, 0xffff0000\ns_waitcnt lgkmcnt(0)')
    for k in range(5): e(f'buffer_load_dwordx4 v[{16+4*k}:{19+4*k}], v4, s[8:11], s23 offen offset:{64*k}')
    e('v_mov_b32 v8, 0\nv_mov_b32 v9, 0\ns_waitcnt vmcnt(0)')
    for i in range(20): e(f'v_lshlrev_b32 v5, 16, v{16+i}\nv_and_b32 v6, s22, v{16+i}\nv_add_f32 v8, v8, v5\nv_add_f32 v9, v9, v6')
    e('v_add_f32 v8, v8, v9'); e('ds_write_b32 v7, v8 offset:0\ns_waitcnt lgkmcnt(0)\ns_barrier\nds_read_b128 v[12:15], v1 offset:0\ns_waitcnt lgkmcnt(0)\nv_add_f32 v12, v12, v13\nv_add_f32 v14, v14, v15\nv_add_f32 v8, v12, v14'); xsum(8,9)
    e('v_mul_f32 v8, 0x3acccccd, v8\nv_mov_b32 v10, 0\nv_mov_b32 v11, 0')
    for i in range(20): e(f'v_lshlrev_b32 v5, 16, v{16+i}\nv_and_b32 v6, s22, v{16+i}\nv_sub_f32 v5, v5, v8\nv_sub_f32 v6, v6, v8\nv_fmac_f32 v10, v5, v5\nv_fmac_f32 v11, v6, v6')
    e('v_add_f32 v10, v10, v11'); e('ds_write_b32 v7, v10 offset:1024\ns_waitcnt lgkmcnt(0)\ns_barrier\nds_read_b128 v[12:15], v1 offset:1024\ns_waitcnt lgkmcnt(0)\nv_add_f32 v12, v12, v13\nv_add_f32 v14, v14, v15\nv_add_f32 v10, v12, v14'); xsum(10,9)
    e('''v_mul_f32 v10, 0x3acccccd, v10
    v_cvt_pk_bf16_f32 v8, v8, v10
    v_and_b32 v10, s22, v8
    v_lshlrev_b32 v8, 16, v8
    v_add_f32 v10, 0x3727c5ac, v10
    v_cvt_pk_bf16_f32 v10, v10, v10
    v_and_b32 v10, s22, v10
    v_sqrt_f32 v10, v10
    s_nop 0
    v_cvt_pk_bf16_f32 v10, v10, v10
    v_and_b32 v10, s22, v10
    v_rcp_f32 v10, v10
    s_nop 0''')
    for i in range(20):
        e(f'''v_lshlrev_b32 v5, 16, v{16+i}
        v_and_b32 v6, s22, v{16+i}
        v_sub_f32 v5, v5, v8
        v_sub_f32 v6, v6, v8
        v_cvt_pk_bf16_f32 v6, v5, v6
        v_lshlrev_b32 v5, 16, v6
        v_and_b32 v6, s22, v6
        v_mul_f32 v5, v5, v10
        v_mul_f32 v6, v6, v10
        v_cvt_pk_bf16_f32 v{16+i}, v5, v6''')
        if i&3==3:
            k=i>>2
            e(f'buffer_store_dwordx4 v[{16+4*k}:{19+4*k}], v1, s[4:7], s21 offen offset:{(k&3)*1024}')
            if k&3==3: e('s_add_u32 s21, s21, 4096')
    e('s_endpgm')
```

```python
from common import *
def pack(tag,karg,size,stride,ncg,cg0,dord,cmap,dst,tstride,ks0):
    e(f'{tag}:')
    srd(8,karg,size)
    udiv(21,20,ncg,23)
    e(f's_mul_i32 s22, s21, {ncg}\ns_sub_u32 s22, s20, s22\ns_mul_i32 s24, s21, {32*stride}\ns_lshl_b32 s25, s22, 7\ns_add_u32 s24, s24, s25\ns_add_u32 s24, s24, {cg0*128}')
    e(f'v_mul_u32_u24 v4, {(4 if dord else 8)*stride}, v2\nv_lshl_add_u32 v4, v3, 3, v4\ns_waitcnt lgkmcnt(0)')
    for t in range(8):
        r=(16*(t>>2)+(t&3)) if dord else t
        e(f's_add_u32 s25, s24, {r*stride}\nbuffer_load_dwordx2 v[{16+2*t}:{17+2*t}], v4, s[8:11], s25 offen')
    e(f's_mov_b32 s26, 1024\ns_lshl_b32 s29, s3, 12\ns_mul_i32 s27, s22, {4*tstride}\ns_lshl_b32 s28, s21, 10\ns_add_u32 s27, s27, s28\ns_add_u32 s27, s27, {dst+ks0*1024}')
    e('v_lshlrev_b32 v5, 8, v2\nv_lshrrev_b32 v6, 2, v3\nv_and_b32 v7, 3, v3')
    if cmap==0:
        e('v_mul_lo_u32 v6, v6, s26\nv_lshl_add_u32 v5, v7, 6, v5\nv_add_u32 v5, v5, v6'); offs=[(0,16*c) for c in range(4)]
    elif cmap==1:
        e('v_lshl_add_u32 v5, v6, 6, v5\nv_lshrrev_b32 v6, 1, v7\nv_lshl_add_u32 v5, v6, 4, v5\nv_and_b32 v7, 1, v7\nv_lshlrev_b32 v7, 1, v7\nv_mul_lo_u32 v7, v7, s26\nv_add_u32 v5, v5, v7')
        offs=[((c&1),32*(c>>1)) for c in range(4)]
    else:
        e('v_mul_lo_u32 v6, v6, s26\nv_lshl_add_u32 v5, v7, 5, v5\nv_add_u32 v5, v5, v6'); offs=[(0,128*(c>>1)+16*(c&1)) for c in range(4)]
    e(f'v_add_u32 v5, s29, v5\nv_add_u32 v6, s29, v1\ns_mov_b32 s30, 0x05040100\ns_mov_b32 s31, 0x07060302\ns_waitcnt vmcnt(0)')
    for c in range(4):
        for d in range(4): e(f'v_perm_b32 v{32+4*c+d}, v{16+2*(2*d+1)+(c>>1)}, v{16+4*d+(c>>1)}, s{30+(c&1)}')
        e(f'ds_write_b128 v5, v[{32+4*c}:{35+4*c}] offset:{offs[c][0]*1024+offs[c][1]}')
    for c in range(4): e(f'ds_read_b128 v[{48+4*c}:{51+4*c}], v6 offset:{c*1024}')
    for c in range(4): e(f's_waitcnt lgkmcnt({3-c})\nbuffer_store_dwordx4 v[{48+4*c}:{51+4*c}], v1, s[4:7], s27 offen\ns_add_u32 s27, s27, {tstride}')
    e('s_endpgm')
def prep():
    T20=20*1024; TK=KT*1024
    jobs=[('pk_k',24,5242880,8192,64,0,0,0,WK,T20,0,1280),('pk_v',32,5242880,8192,64,0,0,0,WV,T20,0,1280),
          ('pk_q',16,5242880,8192,64,0,0,0,WQ,T20,0,1280),('pk_o',40,5242880,1280,10,0,1,1,WOD,TK,0,1280),
          ('pk_s',40,5242880,1280,2,8,1,2,WOD+40*TK,TK,0,256),('pk_g',64,2211840,3456,27,0,0,0,WG,T20,0,540),
          ('pk_u',72,2211840,3456,27,0,0,0,WU,T20,0,540),('pk_d',80,2211840,1280,10,0,1,1,WOD,TK,128,540)]
    roles=[('pr_ln',128),('pr_m0',4)]+[(j[0],j[-1]) for j in jobs]+[('pr_fill',592)]
    tot=sum(r[1] for r in roles); assert tot%4==0
    begin('prep_kernel',tot//4,16384,96,96)
    lanes()
    e('s_lshl_b32 s20, s2, 2\ns_add_u32 s20, s20, s3')
    for n,c in roles: e(f's_cmp_lt_u32 s20, {c}\ns_cbranch_scc1 {n}\ns_sub_u32 s20, s20, {c}')
    e('s_endpgm')
    for j in jobs: pack(*j[:-1])
    e(f'pr_fill:\ns_lshl_b32 s21, s20, 14\ns_mov_b32 s22, {P2+20480}\ns_cmp_ge_u32 s20, 579\ns_cselect_b32 s22, {FA-579*16384}, s22\ns_add_u32 s21, s21, s22\nv_mov_b32 v4, -1\nv_mov_b32 v5, -1\nv_mov_b32 v6, -1\nv_mov_b32 v7, -1\ns_waitcnt lgkmcnt(0)')
    for i in range(16):
        e(f'buffer_store_dwordx4 v[4:7], v1, s[4:7], s21 offen offset:{(i&3)*1024}')
        if i&3==3: e('s_add_u32 s21, s21, 4096')
    e('s_endpgm\npr_m0:\ns_cmp_eq_u32 s20, 0\ns_cbranch_scc1 pr_m1\ns_endpgm\npr_m1:')
    srd(8,8,10240)
    e('v_lshrrev_b32 v4, 1, v3\nv_mul_u32_u24 v4, 1280, v4\nv_lshl_add_u32 v4, v2, 5, v4\nv_and_b32 v5, 1, v3\nv_lshl_add_u32 v4, v5, 2, v4\ns_waitcnt lgkmcnt(0)')
    for kc in range(10):
        for d in range(4): e(f'buffer_load_dword v{16+4*kc+d}, v4, s[8:11], 0 offen offset:{128*kc+8*d}')
    e('s_waitcnt vmcnt(0)')
    for i in range(40): e(f'v_min_u32 v{16+i}, -2, v{16+i}')
    for kc in range(10):
      for cp in range(2): e(f's_mov_b32 s21, {P2+cp*10240+((kc>>2)*5+(kc&3) if kc<8 else (kc-8)*5+4)*1024}\nbuffer_store_dwordx4 v[{16+4*kc}:{19+4*kc}], v1, s[4:7], s21 offen')
    e('s_endpgm\npr_ln:')
    srd(8,0,2621440)
    e('v_mul_u32_u24 v4, 1280, v3\nv_lshl_add_u32 v4, v2, 4, v4\ns_mul_i32 s21, s20, 20480\ns_mov_b32 s22, 0xffff0000\ns_waitcnt lgkmcnt(0)')
    for k in range(20): e(f'buffer_load_dwordx4 v[{16+4*k}:{19+4*k}], v4, s[8:11], s21 offen offset:{64*k}')
    e('v_mov_b32 v8, 0\nv_mov_b32 v9, 0\ns_waitcnt vmcnt(0)')
    for i in range(80): e(f'v_lshlrev_b32 v5, 16, v{16+i}\nv_and_b32 v6, s22, v{16+i}\nv_add_f32 v8, v8, v5\nv_add_f32 v9, v9, v6')
    e('v_add_f32 v8, v8, v9'); xsum(8,9)
    e('v_mul_f32 v8, 0x3acccccd, v8\nv_mov_b32 v10, 0\nv_mov_b32 v11, 0')
    for i in range(80): e(f'v_lshlrev_b32 v5, 16, v{16+i}\nv_and_b32 v6, s22, v{16+i}\nv_sub_f32 v5, v5, v8\nv_sub_f32 v6, v6, v8\nv_fmac_f32 v10, v5, v5\nv_fmac_f32 v11, v6, v6')
    e('v_add_f32 v10, v10, v11'); xsum(10,9)
    e('''v_mul_f32 v10, 0x3acccccd, v10
    v_cvt_pk_bf16_f32 v8, v8, v10
    v_and_b32 v10, s22, v8
    v_lshlrev_b32 v8, 16, v8
    v_add_f32 v10, 0x3727c5ac, v10
    v_cvt_pk_bf16_f32 v10, v10, v10
    v_and_b32 v10, s22, v10
    v_sqrt_f32 v10, v10
    s_nop 0
    v_cvt_pk_bf16_f32 v10, v10, v10
    v_and_b32 v10, s22, v10
    v_rcp_f32 v10, v10
    s_nop 0''')
    for i in range(80):
        e(f'''v_lshlrev_b32 v5, 16, v{16+i}
        v_and_b32 v6, s22, v{16+i}
        v_sub_f32 v5, v5, v8
        v_sub_f32 v6, v6, v8
        v_cvt_pk_bf16_f32 v6, v5, v6
        v_lshlrev_b32 v5, 16, v6
        v_and_b32 v6, s22, v6
        v_mul_f32 v5, v5, v10
        v_mul_f32 v6, v6, v10
        v_cvt_pk_bf16_f32 v{16+i}, v5, v6''')
        if i&3==3:
            k=i>>2
            e(f'buffer_store_dwordx4 v[{16+4*k}:{19+4*k}], v1, s[4:7], s21 offen offset:{(k&3)*1024}')
            if k&3==3: e('s_add_u32 s21, s21, 4096')
    e('s_endpgm')
```

```python
from common import *
SL1=0; SL2=0; SL3=0; DBG=0; LOC=1; PL=1; PF=1
def pst(d,v,n,sr=52): e(f's_cmp_eq_u32 s15, 32\ns_cbranch_scc1 ch_l{n}\nbuffer_store_dwordx4 {R(d)}, v{v}, s[4:7], s{sr} offen sc1\ns_branch ch_m{n}\nch_l{n}:\nbuffer_store_dwordx4 {R(d)}, v{v}, s[4:7], s{sr} offen\nch_m{n}:')
def TS(i):
    if DBG: e(f's_waitcnt lgkmcnt(0)\ns_memtime s[60:61]\ns_waitcnt lgkmcnt(0)\ns_sub_u32 s62, s60, s63\ns_add_u32 s{64+i}, s{64+i}, s62\ns_mov_b32 s63, s60')
PP=0; KVF='sc1'; SLW=6; KP=2; KD=2; WP=0; SW=0; ST=0
MEM=0; KX=10240; QK=18432; OX=0; WB=22784; DUM=162048
loc=[(T,i) for i in range(5) for T in range(6)]
lds_ops=[o for p,o in enumerate(loc) if p%2==1 or p in (10,20)]
reg_ops=[o for o in loc if o not in lds_ops]+[(T,i) for i in range(5,10) for T in range(6)]+[('o',x) for x in range(10)]
def wreg(o,h=None):
    i=reg_ops.index(o); p,b=('a',8*i) if i<32 else ('v',88+8*(i-32))
    return f'{p}[{b}:{b+7}]' if h is None else f'{p}[{b+4*h}:{b+4*h+3}]'
def R(b,n=4): return f'v[{b}:{b+n-1}]'
def smf(acc,A,B): e(f'v_smfmac_f32_16x16x64_bf16 {R(acc)}, {R(A)}, {B}, v4')
def mf(d,a,b,c): e(f'v_mfma_f32_16x16x32_bf16 {R(d)}, {R(a)}, {R(b)}, {c if c==0 else R(c)}')
def rd(d,av,off): e(f'ds_read_b128 {R(d)}, v{av} offset:{off}')
def rdop(d,off): rd(d,10,off); rd(d+4,10,off+1024)
def lg(n): e(f's_waitcnt lgkmcnt({n})')
def retry(tag,t,re):
    e(f'v_cmp_eq_u32 vcc, -1, v{t}\ns_cbranch_vccz {tag}_ok\ns_sub_u32 s34, s34, 1\ns_cbranch_scc1 ch_end\n{re}\ns_branch {tag}\n{tag}_ok:')
def ld5(sr): return f'buffer_load_dwordx4 v[52:55], v8, s[4:7], s{sr} offen sc1\nbuffer_load_dword v11, v5, s[4:7], s{sr} offen sc1'
def chk5(tag,sr,off):
    e(f'{tag}:\ns_waitcnt vmcnt(0)\nv_max3_u32 v36, v52, v53, v54\nv_max3_u32 v36, v36, v55, v11'); retry(tag,36,ld5(sr))
    e(f'ds_write_b128 v8, v[52:55] offset:{off}\nds_write_b32 v5, v11 offset:{off}')
def chain():
    if DBG: e('s_memtime s[76:77]')
    e('s_lshr_b32 s20, s2, 3\ns_and_b32 s21, s2, 1' if PL else 's_lshr_b32 s20, s2, 4\ns_lshl_b32 s20, s20, 3\ns_and_b32 s21, s2, 7\ns_add_u32 s20, s20, s21\ns_bfe_u32 s21, s2, 0x10003')
    e(f'''    s_mul_i32 s18, s21, 20
    s_add_u32 s18, s18, s20
    s_getreg_b32 s16, hwreg(HW_REG_XCC_ID)
    s_and_b32 s16, s16, 7
    s_and_b32 s23, s16, 3
    s_lshl_b32 s23, s23, 3
    s_lshl_b32 s23, 1, s23
    s_and_b32 s24, s16, 4
    s_lshl_b32 s17, s21, 6
    s_add_u32 s17, s17, 128
    s_add_u32 s24, s24, s17
    v_mov_b32 v16, s23
    v_lshlrev_b32 v17, 8, v0
    s_cmp_eq_u32 s3, 0
    s_cselect_b32 s24, s24, 256
    s_waitcnt lgkmcnt(0)
    buffer_atomic_add v16, v17, s[72:75], s24 offen
    s_lshl_b32 s22, s20, 3
    s_lshl_b32 s23, s3, 1
    s_add_u32 s22, s22, s23
    s_mul_i32 s22, s22, 20480
    s_mul_i32 s38, s3, 34816
    s_add_u32 s38, s38, {WB}
    s_waitcnt lgkmcnt(0)''')
    e('s_lshl_b32 s23, s21, 13\ns_add_u32 s40, s22, s23\ns_sub_u32 s42, s22, s23\ns_add_u32 s42, s42, 8192\ns_lshl_b32 s23, s21, 11\ns_add_u32 s41, s22, s23\ns_add_u32 s41, s41, 16384\ns_sub_u32 s43, s22, s23\ns_add_u32 s43, s43, 18432')
    e(f's_lshl_b32 s24, s21, 2\ns_add_u32 s24, s24, s3\ns_lshl_b32 s25, s20, 12\ns_add_u32 s25, s25, {WOD}\ns_mul_i32 s44, s24, {4*KT*1024}\ns_add_u32 s44, s44, s25\ns_mul_i32 s45, s24, {KT*1024}\ns_add_u32 s45, s45, s25')
    def src(o):
        T,i=o
        if T=='o': return f's_add_u32 s23, s44, {(i>>1)*KT*1024+(i&1)*2048}' if i<8 else f's_add_u32 s23, s45, {40*KT*1024+(i&1)*2048}'
        return f's_add_u32 s23, s{40+2*(i//5)+(i%5==4)}, {[WQ,WK,WV][T>>1]+(T&1)*20480+(i%5%4)*2048}'
    for i,o in enumerate(lds_ops):
        e(src(o)+f'\ns_add_u32 m0, s38, {i*2048}\ns_nop 0')
        for h in range(2): e(f'buffer_load_dwordx4 v1, s[4:7], s23 offen offset:{h*1024} lds')
    for o in reg_ops:
        e(src(o))
        for h in range(2): e(f'buffer_load_dwordx4 {wreg(o,h)}, v1, s[4:7], s23 offen offset:{h*1024}')
        e('s_waitcnt vmcnt(40)')
    e('s_mov_b32 s26, s21\ns_mov_b32 s27, s20'); udiv(28,27,5,29)
    e(f'''s_mul_i32 s29, s28, 5
    s_sub_u32 s29, s27, s29
    v_mov_b32 v80, v2
    v_mov_b32 v81, v3
    v_mov_b32 v82, v0
    s_mov_b32 s33, 0x7ffffff0
    v_mov_b32 v87, s33
    v_lshlrev_b32 v79, 2, v82
    v_add_u32 v10, s38, v1
    s_lshl_b32 s23, s3, 6
    s_add_u32 s23, s23, {QK}
    v_mul_u32_u24 v0, 544, v80
    v_lshrrev_b32 v83, 2, v81
    v_lshl_add_u32 v0, v83, 4, v0
    v_and_b32 v84, 3, v81
    v_lshl_add_u32 v0, v84, 1, v0
    v_add_u32 v0, s23, v0
    v_and_b32 v86, 1, v81
    v_lshl_add_u32 v85, v83, 1, v86
    v_cmp_eq_u32 vcc, 1, v86
    v_mov_b32 v4, 0x44444444
    v_mov_b32 v5, 0xeeeeeeee
    v_cndmask_b32 v4, v4, v5, vcc
    v_cmp_le_u32 vcc, 2, v84
    v_mul_u32_u24 v2, 272, v85
    v_lshl_add_u32 v2, v80, 4, v2
    v_add_u32 v2, {QK}, v2
    v_add_u32 v3, 2176, v2
    v_cndmask_b32 v2, v3, v2, vcc
    s_lshl_b32 s23, s3, 9
    v_lshrrev_b32 v3, 1, v80
    v_lshlrev_b32 v3, 8, v3
    v_lshl_add_u32 v3, v85, 5, v3
    v_and_b32 v6, 1, v80
    v_lshl_add_u32 v3, v6, 3, v3
    v_add_u32 v3, s23, v3
    v_mov_b32 v6, {DUM}
    v_lshl_add_u32 v6, v82, 3, v6
    v_cndmask_b32 v3, v6, v3, vcc
    s_lshl_b32 s23, s3, 8
    s_add_u32 s23, s23, 4096
    v_add_u32 v5, s23, v79
    s_lshl_b32 s23, s3, 10
    v_add_u32 v8, s23, v1
    s_mul_i32 s23, s21, 20
    s_mul_i32 s24, s3, 5
    s_add_u32 s23, s23, s24
    s_lshl_b32 s23, s23, 13
    s_lshl_b32 s24, s20, 8
    s_add_u32 s23, s23, s24
    v_lshlrev_b32 v6, 13, v80
    v_lshl_add_u32 v6, v81, 4, v6
    v_add_u32 v6, s23, v6
    s_add_u32 s23, s23, 0x8000
    v_add_u32 v7, s23, v79
    v_cmp_eq_u32 vcc, 0, v84
    s_lshl_b32 s18, s18, 13
    s_nop 0
    v_cndmask_b32 v7, v87, v7, vcc
    v_bfe_u32 v9, v81, 1, 1
    v_lshlrev_b32 v9, 4, v9
    v_lshl_add_u32 v9, v80, 5, v9
    s_cmp_eq_u32 s29, 4
    s_cselect_b32 s23, 6, 8
    v_lshlrev_b32 v12, s23, v83
    v_add_u32 v9, v9, v12
    s_lshl_b32 s23, s28, 10
    s_lshl_b32 s24, s29, 6
    s_add_u32 s23, s23, s24
    s_lshl_b32 s24, s28, 8
    s_add_u32 s24, s24, 4096
    s_cmp_eq_u32 s29, 4
    s_cselect_b32 s23, s24, s23
    v_add_u32 v9, s23, v9
    v_and_b32 v12, 33, v82
    v_cmp_eq_u32 vcc, 0, v12
    s_mul_i32 s23, s21, 5120
    s_add_u32 s50, s23, {P2}
    v_cndmask_b32 v9, v87, v9, vcc
    s_sub_u32 s51, {P2+15360}, s23
    s_mov_b32 s52, {P1}
    v_mov_b32 v12, 0x3f803f80
    v_mov_b32 v13, v12
    v_mov_b32 v14, v12
    v_mov_b32 v15, v12
    s_lshr_b32 s23, s3, 1
    s_lshl_b32 s23, s23, 17
    s_and_b32 s24, s3, 1
    s_lshl_b32 s24, s24, 11
    s_add_u32 s23, s23, s24
    s_lshl_b32 s24, s20, 12
    s_add_u32 s54, s23, s24
    s_add_u32 s54, s54, {KF}
    s_add_u32 s56, s24, {KM}
    s_lshl_b32 s23, s20, 13
    s_lshl_b32 s24, s3, 11
    s_add_u32 s55, s23, s24
    s_lshr_b32 s57, s55, 2
    s_add_u32 s55, s55, {VF}
    s_add_u32 s57, s57, {VM}
    s_add_u32 s39, s24, {KX}
    s_mul_i32 s32, s21, 3
    s_xor_b32 s32, s32, s3
    s_mov_b32 s58, 0
    s_mov_b32 s59, 0x3e0293ee
    s_mov_b32 s34, 400000''')
    def kxpf(): e('s_mov_b32 m0, s39\ns_nop 0\nbuffer_load_dwordx4 v1, s[4:7], s54 offen lds\nbuffer_load_dwordx4 v1, s[4:7], s54 offen offset:1024 lds\ns_add_u32 s54, s54, 0x40000')
    def vxpf(): e('buffer_load_dwordx4 v[80:83], v1, s[4:7], s55 offen\nbuffer_load_dwordx4 v[84:87], v1, s[4:7], s55 offen offset:1024\ns_add_u32 s55, s55, 0x40000')
    def kvw(tag,pre,ld,cmp): e(f'{pre}\n{tag}:\nbuffer_load_dword v17, v16, {ld} offen sc1\ns_waitcnt vmcnt(0)\n{cmp}, v17\ns_cbranch_vccz {tag}_ok\ns_sleep 8\ns_sub_u32 s34, s34, 1\ns_cbranch_scc0 {tag}\ns_endpgm\n{tag}_ok:')
    kvw('ch_k0',f'v_lshlrev_b32 v16, 2, v1\nv_min_u32 v16, {15*64}, v16\ns_lshl_b32 s23, s20, 11\ns_add_u32 s23, s23, {FB}','s[4:7], s23','v_cmp_eq_u32 vcc, -1'); kxpf(); vxpf()
    e('''v_mov_b32 v17, 0
    ch_xp:
    buffer_load_dwordx2 v[18:19], v17, s[72:75], s17 offen sc1
    s_waitcnt vmcnt(0)
    v_sad_u8 v20, v18, 0, 0
    v_sad_u8 v20, v19, 0, v20
    v_cmp_eq_u32 vcc, 32, v20
    s_cbranch_vccnz ch_xok
    s_sleep 8
    s_sub_u32 s34, s34, 1
    s_cbranch_scc0 ch_xp
    s_endpgm
    ch_xok:
    v_readfirstlane_b32 s24, v18
    v_readfirstlane_b32 s25, v19
    s_lshl_b32 s23, s16, 3
    s_lshr_b64 s[24:25], s[24:25], s23
    s_and_b32 s15, s24, 0xff''')
    if not LOC: e('s_mov_b32 s15, 0')
    if DBG:
        e('s_waitcnt vmcnt(0)'); TS(0)
        e('s_sub_u32 s71, s60, s76')
        for i in range(7): e(f's_mov_b32 s{64+i}, 0')
    stamp('s81','s_mov_b32 s81, 140\ns_cmp_eq_u32 s2, 9'); e('ch_loop:'); TS(6)
    e('s_cmp_lg_u32 s32, 3\ns_cbranch_scc1 ch_nored\ns_cmp_eq_u32 s58, 0\ns_cbranch_scc1 ch_nored\ns_cmp_ge_u32 s20, 20\ns_cbranch_scc1 ch_nored')
    e('s_add_u32 s46, s52, s18\ns_add_u32 s47, s46, 4096\ns_add_u32 s49, s50, 10240')
    if SL1: e(f's_sleep {SL1}')
    p1=''.join(f'buffer_load_dwordx4 {R(16+4*x)}, v1, s[4:7], s{46+(x>>2)} offen offset:{(x&3)*1024} sc1\n' for x in range(8)); e(p1)
    e('v_bfe_u32 v52, v1, 4, 2\nv_bfe_u32 v53, v1, 6, 1\nv_lshlrev_b32 v53, 4, v53\nv_mov_b32 v54, 0x3f80\nv_lshlrev_b32 v53, v53, v54')
    for d in range(4): e(f'v_cmp_eq_u32 vcc, {d}, v52\ns_nop 1\nv_cndmask_b32 v{48+d}, 0, v53, vcc')
    for i in range(56,80): e(f'v_mov_b32 v{i}, 0')
    e('ch_p1:')
    for x in range(8):
        e(f's_waitcnt vmcnt({7-x})'); mf(52,48,16+4*x,52 if x else 0); b=16+4*x
        e(f'v_max3_u32 v11, v{b}, v{b+1}, '+('v11' if x else f'v{b+1}')+f'\nv_max3_u32 v11, v{b+2}, v{b+3}, v11')
    retry('ch_p1',11,p1); TS(0)
    e('''s_nop 3
    v_cvt_pk_bf16_f32 v52, v52, v53
    v_cvt_pk_bf16_f32 v53, v54, v55
    v_min_u32 v52, -2, v52
    v_min_u32 v53, -2, v53
    s_nop 1
    v_mov_b32_dpp v54, v52 quad_perm:[1,1,3,3] row_mask:0xf bank_mask:0xf
    v_mov_b32_dpp v55, v53 quad_perm:[1,1,3,3] row_mask:0xf bank_mask:0xf''')
    if not SW: e('buffer_store_dwordx4 v[52:55], v9, s[4:7], s49 offen sc1')
    pst(52,9,2,50)
    if SW: e('buffer_store_dwordx4 v[52:55], v9, s[4:7], s49 offen sc1')
    e(f's_sleep {SL3}\ns_branch ch_pl\nch_nored:\n'+''.join(f'v_mov_b32 v{i}, 0\n' for i in range(56,80))+'s_cmp_lg_u32 s58, 24\ns_cbranch_scc1 ch_sl'); kvw('ch_k1','v_lshrrev_b32 v16, 2, v1\nv_min_u32 v16, 28, v16','s[72:75], 0','v_cmp_ne_u32 vcc, 0x1e0020'); e(f's_branch ch_pl\nch_sl:\ns_sleep {SL2}\nch_pl:'); e(ld5(50)); chk5('ch_p2',50,0); TS(1)
    rdop(36,0); rdop(44,2048); lg(4); e('s_barrier')
    for i in range(5): rd(16+4*i,1,i*1024)
    e('s_cmp_lg_u32 s58, 0\ns_cselect_b32 s23, 0x50000, 0\ns_add_u32 s52, s52, s23\ns_add_u32 s50, s50, 20480')
    lg(4)
    for p,o in enumerate(loc):
        if p==PP: e(ld5(51))
        if o in lds_ops:
            k=lds_ops.index(o)
            if k>=2: lg(2 if k<16 else 0)
            smf(56+4*o[0],16+4*o[1],R(36+8*(k&1),8))
            if k+2<17: rdop(36+8*(k&1),(k+2)*2048)
        else: smf(56+4*o[0],16+4*o[1],wreg(o))
    if PP>=30: e(f's_sleep {PP-30}\n'+ld5(51))
    chk5('ch_p3',51,5120); lg(0); e('s_barrier'); TS(2)
    for i in range(5): rd(16+4*i,1,5120+i*1024)
    kx=lambda d,t,u: rd(d,1,KX+(t*4+u)*1024)
    e('s_add_u32 s51, s51, 20480')
    for i in range(5):
        if i==KD:
            for x in range(5): kx(36+4*x,x&1,x>>1)
        lg(9-i if i>=KD else 4-i)
        for T in range(4): smf(56+4*T,16+4*i,wreg((T,5+i)))
        if i==1: e(f's_mov_b32 m0, {DUM}\nv_and_b32 v11, 0xf0, v1\nv_lshlrev_b32 v11, 3, v11\ns_cmp_eq_u32 s58, 63\ns_cbranch_scc1 ch_nw\nbuffer_load_dword v11, s[4:7], s54 offen lds\nbuffer_load_dword v11, s[4:7], s55 offen lds\n'+(f's_cmp_lg_u32 s32, {WP&3}\ns_cbranch_scc1 ch_nw\ns_cmp_ge_u32 s20, 20\ns_cbranch_scc1 ch_nw\ns_add_u32 s23, s52, s18\nv_lshlrev_b32 v11, 3, v1\ns_nop 0\nbuffer_load_dword v11, s[4:7], s23 offen '+('sc1 ' if WP&4 else '')+'lds\n' if WP else '')+'ch_nw:')
    def post(T):
        a=56+4*T; e(f'v_add_f32 v{a}, v{a}, v{a+1}\nv_add_f32 v{a+2}, v{a+2}, v{a+3}\nv_cvt_pk_bf16_f32 v{a}, v{a}, v{a+2}')
    vq=[(T,i) for i in (9,5,6,7,8) for T in (4,5)]
    def vr(n): T,i=vq[n]; smf(56+4*T,16+4*(i-5),wreg((T,i)))
    vr(0); vr(1); kx(32,1,2); vr(2); vr(3)
    for T in range(4):
        post(T); o=(T>>1)*2176+8*(T&1); e(f'ds_write_b16 v0, v{56+4*T} offset:{o}\nds_write_b16_d16_hi v0, v{56+4*T} offset:{o+272}'); vr(4+T)
    vr(8); vr(9); lg(0); e('s_barrier'); TS(3)
    for u in range(4): rd(16+4*u,2,64*u)
    kr=[(36,40),(44,48),(52,32),(36,40)]
    for u in range(4):
        lg([3,4,3,0][u]); F=16+4*u
        for t in range(3): mf(56+4*t,F if t==0 else kr[u][t-1],F,56+4*t if u else 0)
        if u==0: kx(36,0,3); kx(40,1,3)
    TS(4); post(4); post(5)
    def kvst(p):
        if p!=KP: return
        e('s_cmp_lt_u32 s32, 2\ns_cbranch_scc1 ch_nk\ns_cmp_eq_u32 s32, 3\ns_cbranch_scc1 ch_nv\ns_cmp_eq_u32 s21, 1\ns_cbranch_scc1 ch_k1x')
        for u in range(4): e(f'buffer_store_dwordx4 {R(16+4*u)}, v1, s[4:7], s56 offen offset:{u*1024} {KVF}'+(f'\ns_branch ch_nv\nch_k{u}x:' if u&1 else ''))
        e(f'''ch_nk:
        v_lshrrev_b32 v11, 2, v1
        buffer_store_dword v72, v11, s[4:7], s57 offen {KVF}
        buffer_store_dword v76, v11, s[4:7], s57 offen offset:256 {KVF}
        ch_nv:
        s_cmp_eq_u32 s58, 63
        s_cbranch_scc1 ch_fin''')
    kvst(0)
    e('v_mov_b32 v73, 0\nv_mov_b32 v77, 0\nv_max3_f32 v68, v56, v57, v60\nv_max3_f32 v69, v61, v62, v63\nv_max3_f32 v68, v68, v64, v65\nv_max3_f32 v69, v69, v66, v67\nv_max_f32 v68, v68, v69')
    z=iter(range(36,56))
    def zz(n):
        for _ in range(n): e(f'v_mov_b32 v{next(z)}, 0')
    for sw in (32,16):
        e('v_mov_b32 v69, v68'); zz(2); e(f'v_permlane{sw}_swap_b32 v69, v68'); zz(1); e('v_max_f32 v68, v68, v69')
    e('v_mul_f32 v68, s59, v68')
    sv=list(range(60,68))+[56,57]
    for x in sv: e(f'v_fma_f32 v{x}, v{x}, s59, -v68')
    for x in sv: e(f'v_exp_f32 v{x}, v{x}')
    for d in range(4): e(f'v_cvt_pk_bf16_f32 v{68+d}, v{60+2*d}, v{61+2*d}')
    e('v_cvt_pk_bf16_f32 v58, v56, v57\nv_mov_b32 v59, 0')
    mf(32,12,68,0); mf(60,80,68,0); mf(64,84,68,0)
    e('''v_mfma_f32_16x16x16_bf16 v[32:35], v[12:13], v[58:59], v[32:35]
    v_mfma_f32_16x16x16_bf16 v[60:63], v[72:73], v[58:59], v[60:63]
    v_mfma_f32_16x16x16_bf16 v[64:67], v[76:77], v[58:59], v[64:67]''')
    kvst(1); zz(6); e('v_rcp_f32 v32, v32'); zz(2)
    for x in range(60,68): e(f'v_mul_f32 v{x}, v{x}, v32')
    e('''v_cvt_pk_bf16_f32 v68, v60, v61
    v_cvt_pk_bf16_f32 v69, v64, v65
    v_cvt_pk_bf16_f32 v70, v62, v63
    v_cvt_pk_bf16_f32 v71, v66, v67
    ds_write2_b64 v3, v[68:69], v[70:71] offset0:0 offset1:2''')
    kvst(2); zz(6); lg(0); e('s_barrier'); TS(5); rd(60,1,OX); rd(64,1,OX+1024)
    vxpf(); lg(1)
    for t in range(5): smf(36+4*t,60,wreg(('o',2*t)))
    lg(0)
    for t in range(5): smf(36+4*t,64,wreg(('o',2*t+1)))
    kxpf()
    def fin(t,d):
        a=36+4*t; e(f'v_add_f32 v{a}, v{a}, v{a+1}\nv_add_f32 v{a+2}, v{a+2}, v{a+3}\nv_cvt_pk_bf16_f32 v{d}, v{a}, v{a+2}\nv_min_u32 v{d}, -2, v{d}')
    for t in range(4): fin(t,60+t)
    pst(60,6,0); fin(4,64); e('s_nop 1')
    for k in (1,2,3): e(f'v_mov_b32_dpp v{64+k}, v64 quad_perm:[{k},{k},{k},{k}] row_mask:0xf bank_mask:0xf')
    pst(64,7,1)
    e(f'''s_add_u32 s56, s56, 0x20000
    s_add_u32 s57, s57, 0x10000
    s_add_u32 s58, s58, 1
    s_branch ch_loop
    ch_fin:
    v_mov_b32 v16, 1
    v_bfe_u32 v17, v1, 2, 6
    s_lshl_b32 s23, s20, 1
    s_add_u32 s23, s23, s21
    s_lshl_b32 s23, s23, 2
    s_add_u32 s23, s23, s3
    s_lshl_b32 s23, s23, 6
    s_add_u32 s23, s23, {FA}
    s_waitcnt vmcnt(0)
    buffer_store_dword v16, v17, s[4:7], s23 offen sc1'''); stamp('s81','s_mov_b32 s81, 144\ns_cmp_eq_u32 s2, 9')
    if DBG:
        e('s_cmp_lg_u32 s2, 9\ns_cbranch_scc1 ch_x\ns_lshr_b32 s23, s3, 1\ns_lshl_b32 s23, s23, 6\ns_add_u32 s23, s23, 144\ns_add_u32 s24, s3, 1\ns_and_b32 s24, s24, 2\ns_cbranch_scc1 ch_x\nv_mov_b32 v17, 0')
        for i in range(8): e(f'v_mov_b32 v16, s{64+i}\nbuffer_store_dword v16, v17, s[72:75], s23 offen offset:{4*i}\ns_nop 1')
        e('ch_x:')
    e('ch_end:\ns_endpgm')
```

```python
from common import *
def pack(tag,karg,size,stride,ncg,cg0,dord,cmap,dst,tstride,ks0):
    e(f'{tag}:')
    srd(8,karg,size)
    udiv(21,20,ncg,23)
    e(f's_mul_i32 s22, s21, {ncg}\ns_sub_u32 s22, s20, s22\ns_mul_i32 s24, s21, {32*stride}\ns_lshl_b32 s25, s22, 7\ns_add_u32 s24, s24, s25\ns_add_u32 s24, s24, {cg0*128}')
    e(f'v_mul_u32_u24 v4, {(4 if dord else 8)*stride}, v2\nv_lshl_add_u32 v4, v3, 3, v4\ns_waitcnt lgkmcnt(0)')
    for t in range(8):
        r=(16*(t>>2)+(t&3)) if dord else t
        e(f's_add_u32 s25, s24, {r*stride}\nbuffer_load_dwordx2 v[{16+2*t}:{17+2*t}], v4, s[8:11], s25 offen nt')
    e(f's_mov_b32 s26, 1024\ns_lshl_b32 s29, s3, 12\ns_mul_i32 s27, s22, {4*tstride}\ns_lshl_b32 s28, s21, 10\ns_add_u32 s27, s27, s28\ns_add_u32 s27, s27, {dst+ks0*1024}')
    e('v_lshlrev_b32 v5, 8, v2\nv_lshrrev_b32 v6, 2, v3\nv_and_b32 v7, 3, v3')
    if cmap==0:
        e('v_mul_lo_u32 v6, v6, s26\nv_lshl_add_u32 v5, v7, 6, v5\nv_add_u32 v5, v5, v6'); offs=[(0,16*c) for c in range(4)]
    elif cmap==1:
        e('v_lshl_add_u32 v5, v6, 6, v5\nv_lshrrev_b32 v6, 1, v7\nv_lshl_add_u32 v5, v6, 4, v5\nv_and_b32 v7, 1, v7\nv_lshlrev_b32 v7, 1, v7\nv_mul_lo_u32 v7, v7, s26\nv_add_u32 v5, v5, v7')
        offs=[((c&1),32*(c>>1)) for c in range(4)]
    else:
        e('v_mul_lo_u32 v6, v6, s26\nv_lshl_add_u32 v5, v7, 5, v5\nv_add_u32 v5, v5, v6'); offs=[(0,128*(c>>1)+16*(c&1)) for c in range(4)]
    e(f'v_add_u32 v5, s29, v5\nv_add_u32 v6, s29, v1\ns_mov_b32 s30, 0x05040100\ns_mov_b32 s31, 0x07060302\ns_waitcnt vmcnt(0)')
    for c in range(4):
        for d in range(4): e(f'v_perm_b32 v{32+4*c+d}, v{16+2*(2*d+1)+(c>>1)}, v{16+4*d+(c>>1)}, s{30+(c&1)}')
        e(f'ds_write_b128 v5, v[{32+4*c}:{35+4*c}] offset:{offs[c][0]*1024+offs[c][1]}')
    for c in range(4): e(f'ds_read_b128 v[{48+4*c}:{51+4*c}], v6 offset:{c*1024}')
    for c in range(4): e(f's_waitcnt lgkmcnt({3-c})\nbuffer_store_dwordx4 v[{48+4*c}:{51+4*c}], v1, s[4:7], s27 offen\ns_add_u32 s27, s27, {tstride}')
    e('s_endpgm')
def prep():
    T20=20*1024; TK=KT*1024
    jobs=[('pk_k',24,5242880,8192,64,0,0,0,WK,T20,0,1280),('pk_v',32,5242880,8192,64,0,0,0,WV,T20,0,1280),
          ('pk_q',16,5242880,8192,64,0,0,0,WQ,T20,0,1280),('pk_o',40,5242880,1280,10,0,1,1,WOD,TK,0,1280),
          ('pk_s',40,5242880,1280,2,8,1,2,WOD+40*TK,TK,0,256),('pk_g',64,2211840,3456,27,0,0,0,WG,T20,0,540),
          ('pk_u',72,2211840,3456,27,0,0,0,WU,T20,0,540),('pk_d',80,2211840,1280,10,0,1,1,WOD,TK,128,540)]
    roles=[('pr_ln',512),('pr_m0',4)]+[(j[0],j[-1]) for j in jobs]+[('pr_fill',592)]
    tot=sum(r[1] for r in roles); assert tot%4==0
    begin('prep_kernel',tot//4,16384,64,64)
    lanes()
    e('s_lshl_b32 s20, s2, 2\ns_add_u32 s20, s20, s3')
    for n,c in roles: e(f's_cmp_lt_u32 s20, {c}\ns_cbranch_scc1 {n}\ns_sub_u32 s20, s20, {c}')
    e('s_endpgm')
    for j in jobs: pack(*j[:-1])
    e(f'pr_fill:\ns_lshl_b32 s21, s20, 14\ns_mov_b32 s22, {P2+20480}\ns_cmp_ge_u32 s20, 579\ns_cselect_b32 s22, {FA-579*16384}, s22\ns_add_u32 s21, s21, s22\nv_mov_b32 v4, -1\nv_mov_b32 v5, -1\nv_mov_b32 v6, -1\nv_mov_b32 v7, -1\ns_waitcnt lgkmcnt(0)')
    for i in range(16):
        e(f'buffer_store_dwordx4 v[4:7], v1, s[4:7], s21 offen offset:{(i&3)*1024}')
        if i&3==3: e('s_add_u32 s21, s21, 4096')
    e('s_endpgm\npr_m0:\ns_cmp_eq_u32 s20, 0\ns_cbranch_scc1 pr_m1\ns_endpgm\npr_m1:')
    srd(8,8,10240)
    e('v_lshrrev_b32 v4, 1, v3\nv_mul_u32_u24 v4, 1280, v4\nv_lshl_add_u32 v4, v2, 5, v4\nv_and_b32 v5, 1, v3\nv_lshl_add_u32 v4, v5, 2, v4\ns_waitcnt lgkmcnt(0)')
    for kc in range(10):
        for d in range(4): e(f'buffer_load_dword v{16+4*kc+d}, v4, s[8:11], 0 offen offset:{128*kc+8*d}')
    e('s_waitcnt vmcnt(0)')
    for i in range(40): e(f'v_min_u32 v{16+i}, -2, v{16+i}')
    for kc in range(10):
      for cp in range(2): e(f's_mov_b32 s21, {P2+cp*10240+((kc>>2)*5+(kc&3) if kc<8 else (kc-8)*5+4)*1024}\nbuffer_store_dwordx4 v[{16+4*kc}:{19+4*kc}], v1, s[4:7], s21 offen')
    e('s_endpgm\npr_ln:')
    srd(8,0,2621440)
    e('v_mul_u32_u24 v4, 1280, v3\nv_lshl_add_u32 v4, v2, 4, v4\ns_lshr_b32 s23, s20, 2\ns_mul_i32 s23, s23, 20480\ns_mul_i32 s21, s3, 320\ns_add_u32 s23, s23, s21\ns_mul_i32 s21, s20, 5120\ns_lshl_b32 s24, s3, 2\nv_add_u32 v7, s24, v1\ns_mov_b32 s22, 0xffff0000\ns_waitcnt lgkmcnt(0)')
    for k in range(5): e(f'buffer_load_dwordx4 v[{16+4*k}:{19+4*k}], v4, s[8:11], s23 offen offset:{64*k} nt')
    e('v_mov_b32 v8, 0\nv_mov_b32 v9, 0\ns_waitcnt vmcnt(0)')
    for i in range(20): e(f'v_lshlrev_b32 v5, 16, v{16+i}\nv_and_b32 v6, s22, v{16+i}\nv_add_f32 v8, v8, v5\nv_add_f32 v9, v9, v6')
    e('v_add_f32 v8, v8, v9'); e('ds_write_b32 v7, v8 offset:0\ns_waitcnt lgkmcnt(0)\ns_barrier\nds_read_b128 v[12:15], v1 offset:0\ns_waitcnt lgkmcnt(0)\nv_add_f32 v12, v12, v13\nv_add_f32 v14, v14, v15\nv_add_f32 v8, v12, v14'); xsum(8,9)
    e('v_mul_f32 v8, 0x3acccccd, v8\nv_mov_b32 v10, 0\nv_mov_b32 v11, 0')
    for i in range(20): e(f'v_lshlrev_b32 v5, 16, v{16+i}\nv_and_b32 v6, s22, v{16+i}\nv_sub_f32 v5, v5, v8\nv_sub_f32 v6, v6, v8\nv_fmac_f32 v10, v5, v5\nv_fmac_f32 v11, v6, v6')
    e('v_add_f32 v10, v10, v11'); e('ds_write_b32 v7, v10 offset:1024\ns_waitcnt lgkmcnt(0)\ns_barrier\nds_read_b128 v[12:15], v1 offset:1024\ns_waitcnt lgkmcnt(0)\nv_add_f32 v12, v12, v13\nv_add_f32 v14, v14, v15\nv_add_f32 v10, v12, v14'); xsum(10,9)
    e('''v_mul_f32 v10, 0x3acccccd, v10
    v_cvt_pk_bf16_f32 v8, v8, v10
    v_and_b32 v10, s22, v8
    v_lshlrev_b32 v8, 16, v8
    v_add_f32 v10, 0x3727c5ac, v10
    v_cvt_pk_bf16_f32 v10, v10, v10
    v_and_b32 v10, s22, v10
    v_sqrt_f32 v10, v10
    s_nop 0
    v_cvt_pk_bf16_f32 v10, v10, v10
    v_and_b32 v10, s22, v10
    v_rcp_f32 v10, v10
    s_nop 0''')
    for i in range(20):
        e(f'''v_lshlrev_b32 v5, 16, v{16+i}
        v_and_b32 v6, s22, v{16+i}
        v_sub_f32 v5, v5, v8
        v_sub_f32 v6, v6, v8
        v_cvt_pk_bf16_f32 v6, v5, v6
        v_lshlrev_b32 v5, 16, v6
        v_and_b32 v6, s22, v6
        v_mul_f32 v5, v5, v10
        v_mul_f32 v6, v6, v10
        v_cvt_pk_bf16_f32 v{16+i}, v5, v6''')
        if i&3==3:
            k=i>>2
            e(f'buffer_store_dwordx4 v[{16+4*k}:{19+4*k}], v1, s[4:7], s21 offen offset:{(k&3)*1024}')
            if k&3==3: e('s_add_u32 s21, s21, 4096')
    e('s_endpgm')
```
